```python
import torch

def _softmax(x, axis=-1):
    return torch.softmax(x, dim=axis)
def _gelu(x):
    return torch.nn.functional.gelu(x, approximate="tanh")
def _silu(x):
    return torch.nn.functional.silu(x)
def _sigmoid(x):
    return torch.sigmoid(x)
def _layernorm(x, axis=-1, eps=1e-5):
    m = x.mean(dim=axis, keepdim=True)
    v = x.var(dim=axis, keepdim=True, unbiased=False)
    return (x - m) / torch.sqrt(v + eps)
def _scatter_add(tgt, idx, src, axis=0):
    return tgt.clone().index_add_(axis, idx, src)
def _segment_sum(src, seg, n):
    out = torch.zeros((n,) + src.shape[1:], dtype=src.dtype)
    return out.index_add_(0, seg, src)
def _pad(x, pw):
    flat = tuple(v for pair in reversed(pw) for v in pair)
    return torch.nn.functional.pad(x, flat)

kernel_name = 'concat_heads__gqa_block_cached__mha_block_cached__near_ridge'

def setup_inputs():

    _w = (lambda a: (lambda t: t.to(torch.bfloat16) if t.is_floating_point() else t)(torch.as_tensor(a)))
    def _A_setup():
        B, Sq, D = 16, 64, 512
        Hq, Hkv, Sk, Dh = 32, 8, 512, 128
        assert Hq % Hkv == 0, (Hq, Hkv)
        return {
            "x": _w((lambda *s: torch.randn(*s, dtype=torch.bfloat16) * 0.8)(B, Sq, D)),
            "k_cache": _w((lambda *s: torch.randn(*s, dtype=torch.bfloat16) * 0.8)(B, Hkv, Sk, Dh)),
            "v_cache": _w((lambda *s: torch.randn(*s, dtype=torch.bfloat16) * 0.05)(B, Hkv, Sk, Dh)),
            "wq": _w((lambda *s: torch.randn(*s, dtype=torch.bfloat16) * 0.8)(D, Hq * Dh) * (D ** -0.5)),
            "wo": _w((lambda *s: torch.randn(*s, dtype=torch.bfloat16) * 0.05)(Hq * Dh, D) * ((Hq * Dh) ** -0.5)),
        }
    _A_in = _A_setup()

    def _B_setup():
        B, Sq, D = 16, 64, 512
        H, Sk, Dh = 32, 512, 128
        return {
            "x": _w((lambda *s: torch.randn(*s, dtype=torch.bfloat16) * 0.8)(B, Sq, D)),
            "k_cache": _w((lambda *s: torch.randn(*s, dtype=torch.bfloat16) * 0.8)(B, H, Sk, Dh)),
            "v_cache": _w((lambda *s: torch.randn(*s, dtype=torch.bfloat16) * 0.05)(B, H, Sk, Dh)),
            "wq": _w((lambda *s: torch.randn(*s, dtype=torch.bfloat16) * 0.8)(D, H * Dh) * (D ** -0.5)),
            "wo": _w((lambda *s: torch.randn(*s, dtype=torch.bfloat16) * 0.05)(H * Dh, D) * ((H * Dh) ** -0.5)),
        }
    _B_in = _B_setup()

    return {
        "A_x": _A_in["x"],
        "A_k_cache": _A_in["k_cache"],
        "A_v_cache": _A_in["v_cache"],
        "A_wq": _A_in["wq"],
        "A_wo": _A_in["wo"],
        "B_x": _B_in["x"],
        "B_k_cache": _B_in["k_cache"],
        "B_v_cache": _B_in["v_cache"],
        "B_wq": _B_in["wq"],
        "B_wo": _B_in["wo"],
    }

def reference(A_x, A_k_cache, A_v_cache, A_wq, A_wo, B_x, B_k_cache, B_v_cache, B_wq, B_wo):
    def _A_ref(x, k_cache, v_cache, wq, wo):
        B, Sq, D = x.shape
        Hq, Dh = 32, 128
        Hkv = k_cache.shape[1]
        rep = Hq // Hkv
        q = (lambda x, *d: x.permute(*d))((x @ wq).reshape(B, Sq, Hq, Dh), 0, 2, 1, 3)
        k = (lambda x, n, axis: torch.repeat_interleave(x, n, dim=axis))(k_cache, rep, axis=1)
        v = (lambda x, n, axis: torch.repeat_interleave(x, n, dim=axis))(v_cache, rep, axis=1)
        scores = torch.einsum("bhqd,bhkd->bhqk", q, k) * (Dh ** -0.5)
        p = _softmax(scores, axis=-1)
        o = torch.einsum("bhqk,bhkd->bhqd", p, v)
        return (lambda x, *d: x.permute(*d))(o, 0, 2, 1, 3).reshape(B, Sq, Hq * Dh) @ wo

    def _B_ref(x, k_cache, v_cache, wq, wo):
        B, Sq, D = x.shape
        H, Dh = 32, 128
        q = (lambda x, *d: x.permute(*d))((x @ wq).reshape(B, Sq, H, Dh), 0, 2, 1, 3)
        scores = torch.einsum("bhqd,bhkd->bhqk", q, k_cache) * (Dh ** -0.5)
        p = _softmax(scores, axis=-1)
        o = torch.einsum("bhqk,bhkd->bhqd", p, v_cache)
        return (lambda x, *d: x.permute(*d))(o, 0, 2, 1, 3).reshape(B, Sq, H * Dh) @ wo

    a = _A_ref(A_x, A_k_cache, A_v_cache, A_wq, A_wo)
    b = _B_ref(B_x, B_k_cache, B_v_cache, B_wq, B_wo)
    return torch.concatenate([a, b], axis=-1)
```

```python
import re

_REG = re.compile(r'^([vas])(\d+)$')
_RNG = re.compile(r'^([vas])\[(\d+):(\d+)\]$')


def regs_of(tok):
    tok = tok.strip()
    neg = tok.startswith('-')
    if neg:
        tok = tok[1:]
    if tok.startswith('abs(') and tok.endswith(')'):
        tok = tok[4:-1]
    m = _REG.match(tok)
    if m:
        return [(m.group(1), int(m.group(2)))]
    m = _RNG.match(tok)
    if m:
        return [(m.group(1), i) for i in range(int(m.group(2)), int(m.group(3)) + 1)]
    if tok == 'vcc':
        return [('s', 'vcc')]
    if tok == 'exec':
        return [('s', 'exec')]
    if tok == 'm0':
        return [('s', 'm0')]
    return []


TRANS = ('v_exp_f32', 'v_log_f32', 'v_rcp_f32', 'v_rsq_f32', 'v_sqrt_f32', 'v_sin_f32', 'v_cos_f32')


class Ins:
    __slots__ = ('text', 'op', 'w', 'r', 'kind', 'passes', 'srcc', 'ab', 'wide_store', 'states')


def analyze(text):
    t = text.split(';')[0].strip()
    parts = t.split(None, 1)
    op = parts[0]
    rest = parts[1] if len(parts) > 1 else ''
    ops = [x.strip() for x in rest.split(',')] if rest else []
    mods = ''
    if ops:
        sp = ops[-1].split(None, 1)
        ops[-1] = sp[0]
        mods = sp[1] if len(sp) > 1 else ''
    I = Ins()
    I.text = text; I.op = op; I.w = []; I.r = []; I.kind = 'other'; I.passes = 0
    I.srcc = []; I.ab = []; I.wide_store = False; I.states = 1
    R = [regs_of(o) for o in ops]
    flat = lambda L: [x for l in L for x in l]
    if op.startswith('v_mfma'):
        I.kind = 'mfma'
        I.passes = 8 if '32x32x16' in op else 4
        I.w = R[0]; I.ab = R[1] + R[2]; I.srcc = R[3]; I.r = I.ab + I.srcc
    elif op.startswith('buffer_load') or op.startswith('global_load'):
        if 'lds' in mods.split() or op.startswith('global_load_lds'):
            I.kind = 'vmem_dma'; I.r = flat(R) + [('s', 'm0')]
        else:
            I.kind = 'vmem_load'; I.w = R[0]; I.r = flat(R[1:])
    elif op.startswith('buffer_store') or op.startswith('global_store'):
        I.kind = 'vmem_store'; I.r = flat(R)
        I.wide_store = op.endswith('x4') or op.endswith('x3')
        I.ab = R[0] if op.startswith('buffer') else R[1]
    elif op.startswith('buffer_atomic') or op.startswith('global_atomic'):
        if 'sc0' in mods.split():
            I.kind = 'vmem_load'; I.w = R[0]; I.r = flat(R)
        else:
            I.kind = 'vmem_store'; I.r = flat(R)
    elif op in ('buffer_inv', 'buffer_wbl2'):
        I.kind = 'vmem_store'
    elif op.startswith('ds_read') or op.startswith('ds_bpermute') or op.startswith('ds_swizzle'):
        I.kind = 'ds_load'; I.w = R[0]; I.r = flat(R[1:])
    elif op.startswith('ds_'):
        I.kind = 'ds_store'; I.r = flat(R)
    elif op.startswith('s_load') or op.startswith('s_memrealtime') or op.startswith('s_memtime'):
        I.kind = 'smem'; I.w = R[0]; I.r = flat(R[1:])
    elif op.startswith('v_permlane') and 'swap' in op:
        I.kind = 'valu'; I.w = R[0] + R[1]; I.r = R[0] + R[1]
    elif op.startswith('v_cmp'):
        I.kind = 'valu'; I.w = R[0]; I.r = flat(R[1:])
    elif op.startswith('v_'):
        I.kind = 'valu'; I.w = R[0]; I.r = flat(R[1:])
        if op.startswith('v_fmac') or op.startswith('v_pk_fmac'):
            I.r = I.r + R[0]
        if op.startswith('v_add_co') or op.startswith('v_addc_co') or op.startswith('v_sub_co'):
            I.w = R[0] + R[1]; I.r = flat(R[2:])
    elif op == 's_nop':
        I.kind = 'nop'; I.states = int(ops[0], 0) + 1
    elif op in ('s_waitcnt', 's_barrier', 's_endpgm', 's_sleep', 's_setprio') or op.startswith('s_cbranch') or op == 's_branch':
        I.kind = 'ctl'
    elif op.startswith('s_cmp'):
        I.kind = 'salu'; I.r = flat(R)
    elif op.startswith('s_'):
        I.kind = 'salu'; I.w = R[0] if R else []; I.r = flat(R[1:])
    return I


class Asm:
    def __init__(self):
        self.out = []
        self.vm = []
        self.lg = []
        self.smem = False
        self.hist = []
        self.n_ins = 0

    def raw(self, text):
        self.out.append(text)

    def comment(self, text):
        self.out.append('  ; ' + text)

    def label(self, name):
        self.out.append(name + ':')

    def _push(self, I):
        self.out.append('  ' + I.text)
        self.hist.append(I)
        if len(self.hist) > 24:
            self.hist.pop(0)
        self.n_ins += 1

    def nop(self, states):
        while states > 0:
            n = min(states, 16)
            self._push(analyze(f's_nop {n-1}'))
            states -= n

    def wait(self, vm=None, lg=None):
        parts = []
        if vm is not None and len(self.vm) > vm:
            assert vm <= 63
            parts.append(f'vmcnt({vm})')
            self.vm = self.vm[len(self.vm) - vm:] if vm else []
        if lg is not None and (len(self.lg) > lg or (self.smem and lg == 0)):
            if self.smem:
                lg = 0
            lg = min(lg, 15)
            parts.append(f'lgkmcnt({lg})')
            self.lg = self.lg[len(self.lg) - lg:] if lg else []
            if lg == 0:
                self.smem = False
        if parts:
            self._push(analyze('s_waitcnt ' + ' '.join(parts)))

    def force_wait(self, text):
        m = re.search(r'vmcnt\((\d+)\)', text)
        if m:
            n = int(m.group(1)); self.vm = self.vm[len(self.vm) - n:] if n and len(self.vm) > n else (self.vm if n else [])
        m = re.search(r'lgkmcnt\((\d+)\)', text)
        if m:
            n = int(m.group(1)); self.lg = self.lg[len(self.lg) - n:] if n and len(self.lg) > n else (self.lg if n else [])
            if n == 0: self.smem = False
        self._push(analyze('s_waitcnt ' + text))

    def _need_states(self, I):
        need = 0
        dist = 0
        rs = set(I.r); ws = set(I.w)
        for P in reversed(self.hist):
            pw = set(P.w)
            req = 0
            if P.kind == 'valu':
                vw = {x for x in pw if x[0] in 'va'}
                sw = {x for x in pw if x[0] == 's'}
                if I.kind == 'mfma' and vw & rs:
                    req = max(req, 2)
                if I.kind == 'valu' and I.op.startswith('v_permlane') and vw & rs:
                    req = max(req, 2)
                if I.kind == 'valu' and (I.op.startswith('v_readfirstlane') or I.op.startswith('v_readlane')) and vw & rs:
                    req = max(req, 1)
                if P.op in TRANS and I.kind in ('valu', 'mfma', 'vmem_store', 'ds_store') and vw & (rs | ws):
                    req = max(req, 1 if I.kind != 'mfma' else 2)
                if 'dpp' in I.text and vw & rs:
                    req = max(req, 2)
                if sw & rs:
                    if I.kind == 'valu':
                        req = max(req, 2)
                    if I.kind.startswith('vmem'):
                        req = max(req, 5)
                    if I.kind in ('salu', 'ctl'):
                        req = max(req, 1)
                if ('s', 'vcc') in sw and I.op.startswith('s_cbranch_vcc'):
                    req = max(req, 1)
            elif P.kind == 'mfma':
                big = {4: 8, 8: 12}[P.passes]
                if I.kind == 'mfma':
                    if pw & set(I.ab):
                        req = max(req, big)
                    if pw & set(I.srcc) and not (list(P.w) == list(I.srcc) and P.passes == I.passes):
                        req = max(req, big - 2)
                    if pw & ws and not (list(P.w) == list(I.srcc) and P.passes == I.passes):
                        req = max(req, big)
                else:
                    if pw & (rs | ws):
                        req = max(req, big)
                    if I.kind == 'valu' and set(P.srcc) & ws:
                        req = max(req, {4: 3, 8: 7}[P.passes])
            elif P.kind == 'salu':
                if ('s', 'm0') in pw and I.kind == 'vmem_dma':
                    req = max(req, 1)
            elif P.kind == 'vmem_store' and P.wide_store:
                if set(P.ab) & ws:
                    req = max(req, 2)
            if req > dist:
                need = max(need, req - dist)
            dist += P.states
            if dist >= 16:
                break
        return need

    def __call__(self, text):
        I = analyze(text)
        touched = set(I.r) | set(I.w)
        vmn = None
        for i, d in enumerate(self.vm):
            if d & touched:
                vmn = len(self.vm) - 1 - i
        lgn = None
        for i, d in enumerate(self.lg):
            if d & touched:
                lgn = len(self.lg) - 1 - i
        if vmn is not None or lgn is not None:
            self.wait(vm=vmn, lg=lgn)
        n = self._need_states(I)
        if n:
            self.nop(n)
        self._push(I)
        if I.kind in ('vmem_load', 'vmem_dma', 'vmem_store'):
            self.vm.append(set(I.w))
            assert len(self.vm) <= 63, "too many outstanding vmem ops"
        elif I.kind in ('ds_load', 'ds_store'):
            self.lg.append(set(I.w))
            if len(self.lg) > 15:
                pass
        elif I.kind == 'smem':
            self.lg.append(set(I.w)); self.smem = True

    def flush_hazards(self):
        worst = 0
        dist = 0
        for P in reversed(self.hist):
            req = 0
            if P.kind == 'mfma':
                req = {4: 8, 8: 12}[P.passes]
            elif P.kind == 'valu':
                req = 5 if any(x[0] == 's' for x in P.w) else 2
            elif P.kind in ('salu', 'vmem_store'):
                req = 2
            if req > dist:
                worst = max(worst, req - dist)
            dist += P.states
            if dist >= 16:
                break
        if worst:
            self.nop(worst)

    def state(self):
        return ([frozenset(x) for x in self.vm], [frozenset(x) for x in self.lg])

    def set_state(self, st):
        self.vm = [set(x) for x in st[0]]; self.lg = [set(x) for x in st[1]]

    def text(self):
        return '\n'.join(self.out) + '\n'
```

```python
import sys, struct, math
sys.path.insert(0, 'work')
from asmfw import Asm

NAME = "concat_heads__gqa_block_cached__mha_block_cached__near_ridge"
HEADER = open('cdna_kernels/' + NAME + '.s.ref').read().split('; Override launch')[0]


def f32bits(x):
    return '0x%08x' % struct.unpack('<I', struct.pack('<f', x))[0]


def vr(b, n=4): return f'v[{b}:{b+n-1}]'
def ar(b, n=4): return f'a[{b}:{b+n-1}]'

V_LANE, V_K, V_V, V_WQ, V_WO, V_XR, V_XA, V_T0, V_T1, V_ST = 1, 2, 3, 4, 5, 6, 7, 8, 9, 10
V_MC = 11
V_X, V_Y = 12, 13
V_T2, V_T3 = 14, 15
F = 16
BF = 32
V_NM = 32
V_L = 36
V_M = 40
V_AL = 44
V_TMP = 48
S = 64
VS = 128
Q = 192
ACC = 0
KS = 128

sW, sB, sHG, sH, sISA = 3, 4, 5, 6, 7
sX, sWQ, sK, sV, sWO, sWS = 44, 48, 52, 56, 60, 64
sSELL, sSELH, sC = 68, 69, 70
sT0, sT1, sT2, sT3 = 71, 72, 73, 74
sKS, sKSP, sCNT, sKOFF, sVOFF, sHOFF = 75, 76, 77, 78, 79, 80
sWOB = 81

LDS_X = 0
LDS_O = 65536


def gen(kv_pol='nt', w_pol='', stamps=False, part_bf16=False):
    a = Asm()
    kvp = (' ' + kv_pol) if kv_pol else ''
    wp = (' ' + w_pol) if w_pol else ''
    a.raw(HEADER.rstrip())
    a.raw(f"; @launch kernel={NAME}_kernel grid=(256,1,1) block=(256,1,1) lds=131072")
    a.raw(f"; @launch kernel=reduce_kernel grid=(256,1,1) block=(256,1,1) lds=0")
    if stamps:
        a.raw("; stamps=1024")
    a.raw('.amdgcn_target "amdgcn-amd-amdhsa--gfx950"')
    a.raw('.text')
    a.raw(f'.globl {NAME}_kernel')
    a.raw('.p2align 8')
    a.raw(f'.type {NAME}_kernel,@function')
    a.label(f'{NAME}_kernel')
    a('s_cmp_ge_u32 s2, 256')
    a('s_cbranch_scc1 L_end')
    if stamps:
        a('s_memrealtime s[90:91]')
    a('s_load_dwordx16 s[16:31], s[0:1], 0')
    a('s_load_dwordx8 s[32:39], s[0:1], 64')
    a('s_load_dwordx2 s[40:41], s[0:1], 96')
    a('v_lshrrev_b32 v1, 6, v0')
    a(f'v_readfirstlane_b32 s{sW}, v1')
    a(f'v_and_b32 v{V_LANE}, 63, v0')
    a(f's_and_b32 s{sHG}, s2, 7')
    a(f's_lshr_b32 s{sT0}, s2, 3')
    a(f's_and_b32 s{sB}, s{sT0}, 15')
    a(f's_lshr_b32 s{sISA}, s{sT0}, 4')
    a(f's_lshl_b32 s{sH}, s{sHG}, 2')
    a(f's_add_u32 s{sH}, s{sH}, s{sW}')
    a(f's_mov_b32 s{sSELL}, 0x05040100')
    a(f's_mov_b32 s{sSELH}, 0x07060302')
    cval = (128 ** -0.5) * math.log2(math.e)
    a(f's_mov_b32 s{sC}, {f32bits(cval)}')
    a(f'v_and_b32 v{V_T0}, 15, v{V_LANE}')
    a(f'v_lshrrev_b32 v{V_T1}, 4, v{V_LANE}')
    a(f'v_lshlrev_b32 v{V_K}, 8, v{V_T0}')
    a(f'v_lshl_add_u32 v{V_K}, v{V_T1}, 4, v{V_K}')
    a(f'v_lshlrev_b32 v{V_V}, 10, v{V_T1}')
    a(f'v_lshl_add_u32 v{V_V}, v{V_T0}, 4, v{V_V}')
    a(f'v_and_b32 v{V_T2}, 3, v{V_T0}')
    a(f'v_lshlrev_b32 v{V_T2}, 2, v{V_T2}')
    a(f'v_lshrrev_b32 v{V_T3}, 2, v{V_T0}')
    a(f'v_add_u32 v{V_T2}, v{V_T2}, v{V_T3}')
    a(f'v_lshlrev_b32 v{V_WQ}, 16, v{V_T1}')
    a(f'v_lshl_add_u32 v{V_WQ}, v{V_T2}, 4, v{V_WQ}')
    a(f'v_lshlrev_b32 v{V_WO}, 15, v{V_T1}')
    a(f'v_lshl_add_u32 v{V_WO}, v{V_T0}, 4, v{V_WO}')
    a(f'v_lshlrev_b32 v{V_XA}, 10, v{V_T0}')
    a(f'v_lshl_add_u32 v{V_XA}, v{V_T1}, 4, v{V_XA}')
    a(f'v_lshlrev_b32 v{V_ST}, 4, v{V_LANE}')
    a.wait(lg=0)
    a(f's_cmp_eq_u32 s{sISA}, 1')
    def sel(dst, pa, pb):
        a(f's_cselect_b32 s{dst}, s{pa}, s{pb}')
        a(f's_cselect_b32 s{dst+1}, s{pa+1}, s{pb+1}')
    sel(sX, 16, 26); sel(sK, 18, 28); sel(sV, 20, 30); sel(sWQ, 22, 32); sel(sWO, 24, 34)
    a(f's_lshl_b32 s{sT0}, s{sB}, 3'); a(f's_add_u32 s{sT0}, s{sT0}, s{sHG}')
    a(f's_lshl_b32 s{sT1}, s{sB}, 5'); a(f's_add_u32 s{sT1}, s{sT1}, s{sH}')
    a(f's_cmp_eq_u32 s{sISA}, 1')
    a(f's_cselect_b32 s{sT0}, s{sT0}, s{sT1}')
    a(f's_lshl_b32 s{sT0}, s{sT0}, 17')
    for sr in (sK, sV):
        a(f's_add_u32 s{sr}, s{sr}, s{sT0}'); a(f's_addc_u32 s{sr+1}, s{sr+1}, 0')
    a(f's_lshl_b32 s{sT0}, s{sB}, 16')
    a(f's_add_u32 s{sX}, s{sX}, s{sT0}'); a(f's_addc_u32 s{sX+1}, s{sX+1}, 0')
    for sr, size in ((sX, 65536), (sWQ, 4 << 20), (sK, 131072), (sV, 131072), (sWO, 4 << 20)):
        a(f's_and_b32 s{sr+1}, s{sr+1}, 0xffff')
        a(f's_mov_b32 s{sr+2}, {size}')
        a(f's_mov_b32 s{sr+3}, 0x20000')
    psz = 16384 if part_bf16 else 32768
    a(f's_xor_b32 s{sT0}, s{sISA}, 1'); a(f's_lshl_b32 s{sT0}, s{sT0}, 4'); a(f's_add_u32 s{sT0}, s{sT0}, s{sB}')
    a(f's_lshl_b32 s{sT0}, s{sT0}, 3'); a(f's_add_u32 s{sT0}, s{sT0}, s{sHG}')
    a(f's_lshl_b32 s{sT0}, s{sT0}, 2'); a(f's_add_u32 s{sT0}, s{sT0}, s{sW}')
    a(f's_mul_i32 s{sT0}, s{sT0}, {psz}')
    a(f's_add_u32 s{sT0}, s{sT0}, 0x100000')
    a(f's_add_u32 s{sWS}, s40, s{sT0}'); a(f's_addc_u32 s{sWS+1}, s41, 0')
    a(f's_and_b32 s{sWS+1}, s{sWS+1}, 0xffff'); a(f's_mov_b32 s{sWS+2}, {psz}'); a(f's_mov_b32 s{sWS+3}, 0x20000')
    a(f's_lshl_b32 s{sHOFF}, s{sH}, 8')
    a(f's_lshl_b32 s{sWOB}, s{sHG}, 19'); a(f's_lshl_b32 s{sT0}, s{sW}, 8'); a(f's_add_u32 s{sWOB}, s{sWOB}, s{sT0}')

    a(f's_lshl_b32 s{sT0}, s{sW}, 14')
    a(f's_lshl_b32 s{sT1}, s{sW}, 10')
    for ks in range(16):
        a(f's_add_u32 m0, s{sT1}, {LDS_X + ks*4096}')
        a(f'buffer_load_dwordx4 v{V_XA}, s[{sX}:{sX+3}], s{sT0} offen{wp} lds')
        a(f's_add_u32 s{sT0}, s{sT0}, 64')

    WB = [S, S + 32, VS, VS + 32]

    def wq_block_loads(slot, sks):
        L = []
        def first():
            a(f's_lshl_b32 s{sT2}, s{sks}, 18')
            a(f's_add_u32 s{sT2}, s{sT2}, s{sHOFF}')
            a(f'buffer_load_dwordx4 {vr(WB[slot])}, v{V_WQ}, s[{sWQ}:{sWQ+3}], s{sT2} offen{wp}')
        L.append(first)
        for i in range(1, 8):
            def nxt(i=i):
                a(f's_add_u32 s{sT2}, s{sT2}, 8192')
                a(f'buffer_load_dwordx4 {vr(WB[slot] + 4*i)}, v{V_WQ}, s[{sWQ}:{sWQ+3}], s{sT2} offen{wp}')
            L.append(nxt)
        return L

    def wo_block_loads(base, sks):
        L = []
        for i in range(8):
            def ld(i=i):
                if i == 0:
                    a(f's_lshr_b32 s{sT2}, s{sks}, 2'); a(f's_lshl_b32 s{sT2}, s{sT2}, 17')
                    a(f's_and_b32 s{sT3}, s{sks}, 3'); a(f's_lshl_b32 s{sT3}, s{sT3}, 13')
                    a(f's_add_u32 s{sT2}, s{sT2}, s{sT3}'); a(f's_add_u32 s{sT2}, s{sT2}, s{sWOB}')
                if i == 4:
                    a(f's_add_u32 s{sT2}, s{sT2}, 4096')
                a(f'buffer_load_dwordx4 {vr(base + 4*i)}, v{V_WO}, s[{sWO}:{sWO+3}], s{sT2} offen offset:{(i&3)*1024}{wp}')
            L.append(ld)
        return L

    def k_load(kt, s):
        def ld():
            if s == 0:
                a(f's_add_u32 s{sT0}, s{sKOFF}, {kt*4096}')
            a(f'buffer_load_dwordx4 {ar(KS + (kt*4+s)*4)}, v{V_K}, s[{sK}:{sK+3}], s{sT0} offen offset:{64*s}{kvp}')
        return ld

    def v_load(g, i):
        def ld():
            if i % 4 == 0:
                a(f's_add_u32 s{sT1}, s{sVOFF}, {g*8192 + (i//4)*4096}')
            a(f'buffer_load_dwordx4 {vr(VS + (g*8+i)*4)}, v{V_V}, s[{sV}:{sV+3}], s{sT1} offen offset:{(i%4)*256}{kvp}')
        return ld

    def perms(blk, fp, fset):
        L = []
        for half, sel_ in ((0, sSELL), (1, sSELH)):
            for p in range(4):
                def pm(half=half, sel_=sel_, p=p):
                    a(f'v_perm_b32 v{F + fset*8 + half*4 + p}, v{blk + (2*p+1)*4 + fp}, v{blk + (2*p)*4 + fp}, s{sel_}')
                L.append(pm)
        return L

    def gemm_block(blk, bfr, post=(), fill=()):
        post = list(post); fill = list(fill)
        for pm in perms(blk, 0, 0):
            pm()
        for fp in range(4):
            nxt = perms(blk, fp + 1, (fp + 1) & 1) if fp < 3 else post
            nxt = list(nxt)
            for half in range(2):
                f = 2*fp + half
                for qt in range(4):
                    acc = ACC + (f*4 + qt)*4
                    a(f'v_mfma_f32_16x16x32_bf16 {ar(acc)}, {vr(F + (fp&1)*8 + half*4)}, {vr(bfr[qt])}, {ar(acc)}')
                    if nxt:
                        nxt.pop(0)()
                    if fill:
                        fill.pop(0)()
            for c in nxt:
                c()
        for c in fill:
            c()

    def bfrag_reads(buf, lds_base, sks):
        L = []
        def adr():
            a(f's_lshl_b32 s{sT3}, s{sks}, 12')
            a(f'v_add_u32 v{V_XR}, s{sT3}, v{V_ST}')
        L.append(adr)
        for qt in range(4):
            def rd(qt=qt):
                a(f'ds_read_b128 {vr(BF + buf*16 + qt*4)}, v{V_XR} offset:{lds_base + qt*1024}')
            L.append(rd)
        return L

    def inc_ks(s):
        a(f's_add_u32 s{s}, s{s}, 1'); a(f's_and_b32 s{s}, s{s}, 15')

    def proj_phase(tag, lds_base, block_loads, last_fill):
        assert lds_base < 65536 or True
        def step(u, last):
            fill = []
            if not (last and u == 3):
                inc_ks(sKS)
                fill = bfrag_reads((u + 1) & 1, lds_base, sKS)
            if not last:
                post = block_loads(u, sKSP) + [lambda: inc_ks(sKSP)]
            else:
                post = last_fill(u)
            extra = extra_fill(u, last)
            gemm_block(WB[u], [BF + (u & 1)*16 + qt*4 for qt in range(4)], post=post, fill=fill + extra)
        a(f's_mov_b32 s{sCNT}, 3')
        a.flush_hazards()
        st0 = a.state()
        a.label(f'L_{tag}')
        for u in range(4):
            step(u, False)
        a(f's_sub_u32 s{sCNT}, s{sCNT}, 1')
        a(f's_cmp_lg_u32 s{sCNT}, 0')
        a.flush_hazards()
        st1 = a.state()
        a(f's_cbranch_scc1 L_{tag}')
        check_states(st0, st1, tag)
        for u in range(4):
            step(u, True)

    def check_states(st0, st1, tag):
        n = min(len(st0[0]), len(st1[0]))
        assert len(st0[0]) >= len(st1[0]) and st0[0][len(st0[0]) - n:] == st1[0][len(st1[0]) - n:], (tag, 'vm', len(st0[0]), len(st1[0]))
        n = min(len(st0[1]), len(st1[1]))
        assert len(st0[1]) == len(st1[1]) and st0[1] == st1[1], (tag, 'lg', st0[1], st1[1])

    a(f's_mov_b32 s{sKS}, s{sB}')
    a(f's_mov_b32 s{sKSP}, s{sB}')
    a(f's_mov_b32 s{sKOFF}, 0')
    a(f's_mov_b32 s{sVOFF}, 0')
    for u in range(4):
        for c in wq_block_loads(u, sKSP):
            c()
        inc_ks(sKSP)
    for i in range(128):
        a(f'v_accvgpr_write_b32 a{ACC+i}, 0')
    a.wait(vm=32)
    a('s_barrier')
    for c in bfrag_reads(0, LDS_X, sKS):
        c()
    extra_fill = lambda u, last: []
    def p1_last(u):
        L = []
        if u == 0:
            L += [k_load(kt, s) for kt in range(2) for s in range(4)]
        if u == 1:
            L += [k_load(kt, s) for kt in range(2, 4) for s in range(4)]
        if u == 2:
            L += [v_load(0, i) for i in range(8)]
        if u == 3:
            L += [v_load(1, i) for i in range(8)]
        return L
    proj_phase('p1', LDS_X, lambda u, sks: wq_block_loads(u, sks), p1_last)
    for qt in range(4):
        for r in range(4):
            for fp in range(4):
                t0 = V_TMP + (fp*2) % 16; t1 = t0 + 1
                a(f'v_accvgpr_read_b32 v{t0}, a{ACC + ((2*fp)*4 + qt)*4 + r}')
                a(f'v_accvgpr_read_b32 v{t1}, a{ACC + ((2*fp+1)*4 + qt)*4 + r}')
                a(f'v_cvt_pk_bf16_f32 v{Q + (qt*4 + r)*4 + fp}, v{t0}, v{t1}')
    for i in range(128):
        a(f'v_accvgpr_write_b32 a{ACC+i}, 0')
    a(f'v_mov_b32 v{V_MC}, {f32bits(-3.0e38)}')
    for qt in range(4):
        a(f'v_mov_b32 v{V_L+qt}, 0')
        a(f'v_mov_b32 v{V_NM+qt}, 0')


    def chunk(last, idx):
        if not last:
            a(f's_add_u32 s{sKOFF}, s{sKOFF}, 16384')
        for kt in range(4):
            for s in range(4):
                for qt in range(4):
                    sreg = S + (kt*4 + qt)*4
                    c = '0' if s == 0 else vr(sreg)
                    a(f'v_mfma_f32_16x16x32_bf16 {vr(sreg)}, {ar(KS + (kt*4+s)*4)}, {vr(Q + (qt*4+s)*4)}, {c}')
                if not last:
                    k_load(kt, s)()
        for qt in range(4):
            vals = [S + (kt*4 + qt)*4 + r for kt in range(4) for r in range(4)]
            a(f'v_max3_f32 v{V_M+qt}, v{vals[0]}, v{vals[1]}, v{vals[2]}')
            for i in range(3, 15, 2):
                a(f'v_max3_f32 v{V_M+qt}, v{V_M+qt}, v{vals[i]}, v{vals[i+1]}')
            a(f'v_max_f32 v{V_M+qt}, v{V_M+qt}, v{vals[15]}')
        a(f'v_permlane32_swap_b32 v{V_M}, v{V_M+1}')
        a(f'v_permlane32_swap_b32 v{V_M+2}, v{V_M+3}')
        a(f'v_max_f32 v{V_X}, v{V_M}, v{V_M+1}')
        a(f'v_max_f32 v{V_Y}, v{V_M+2}, v{V_M+3}')
        a(f'v_permlane16_swap_b32 v{V_X}, v{V_Y}')
        a(f'v_max_f32 v{V_X}, v{V_X}, v{V_Y}')
        a(f'v_mul_f32 v{V_X}, s{sC}, v{V_X}')
        a(f'v_sub_f32 v{V_Y}, v{V_X}, v{V_MC}')
        a(f'v_cmp_lt_f32 vcc, {f32bits(8.0)}, v{V_Y}')
        a.nop(1)
        a(f's_cbranch_vccz L_fast{idx}')
        st = a.state()
        a(f'v_max_f32 v{V_X}, v{V_X}, v{V_MC}')
        a(f'v_sub_f32 v{V_Y}, v{V_MC}, v{V_X}')
        a(f'v_exp_f32 v{V_Y}, v{V_Y}')
        a(f'v_mov_b32 v{V_MC}, v{V_X}')
        a(f'v_sub_f32 v{V_X}, 0, v{V_X}')
        def expand(src, dst):
            a(f'v_mov_b32 v{dst+0}, v{src}')
            a(f'v_mov_b32 v{dst+2}, v{src}')
            a(f'v_permlane16_swap_b32 v{dst+0}, v{dst+2}')
            a(f'v_mov_b32 v{dst+1}, v{dst+0}')
            a(f'v_mov_b32 v{dst+3}, v{dst+2}')
            a(f'v_permlane32_swap_b32 v{dst+0}, v{dst+1}')
            a(f'v_permlane32_swap_b32 v{dst+2}, v{dst+3}')
        expand(V_X, V_NM)
        expand(V_Y, V_AL)
        for qt in range(4):
            a(f'v_mul_f32 v{V_L+qt}, v{V_L+qt}, v{V_AL+qt}')
        for f in range(8):
            for qt in range(4):
                for r in range(4):
                    t = V_TMP + (qt*4 + r)
                    a(f'v_accvgpr_read_b32 v{t}, a{ACC + (f*4+qt)*4 + r}')
            for qt in range(4):
                for r in range(4):
                    t = V_TMP + (qt*4 + r)
                    a(f'v_mul_f32 v{t}, v{t}, v{V_AL+qt}')
            for qt in range(4):
                for r in range(4):
                    t = V_TMP + (qt*4 + r)
                    a(f'v_accvgpr_write_b32 a{ACC + (f*4+qt)*4 + r}, v{t}')
        a.flush_hazards()
        assert a.state() == st
        a.label(f'L_fast{idx}')
        for g in range(2):
            for qt in range(4):
                for kt in (2*g, 2*g + 1):
                    b = S + (kt*4 + qt)*4
                    for r in range(4):
                        a(f'v_fma_f32 v{b+r}, v{b+r}, s{sC}, v{V_NM+qt}')
                    for r in range(4):
                        a(f'v_exp_f32 v{b+r}, v{b+r}')
                    for r in range(4):
                        a(f'v_add_f32 v{V_L+qt}, v{V_L+qt}, v{b+r}')
                    d = S + ((2*g)*4 + qt)*4 + (kt & 1)*2
                    a(f'v_cvt_pk_bf16_f32 v{d}, v{b}, v{b+1}')
                    a(f'v_cvt_pk_bf16_f32 v{d+1}, v{b+2}, v{b+3}')
        if not last:
            a(f's_add_u32 s{sVOFF}, s{sVOFF}, 16384')
        for g in range(2):
            if not last:
                post = [v_load(g, i) for i in range(8)]
            else:
                post = wo_block_loads(WB[2 + g], sKSP) + [lambda: inc_ks(sKSP)]
            gemm_block(VS + g*32, [S + ((2*g)*4 + qt)*4 for qt in range(4)], post=post)

    a(f's_mov_b32 s{sCNT}, 7')
    a.flush_hazards()
    st0 = a.state()
    a.label('L_p2')
    chunk(False, 0)
    a(f's_sub_u32 s{sCNT}, s{sCNT}, 1')
    a(f's_cmp_lg_u32 s{sCNT}, 0')
    a.flush_hazards()
    st1 = a.state()
    a('s_cbranch_scc1 L_p2')
    check_states(st0, st1, 'p2')
    a(f's_add_u32 s{sKSP}, s{sB}, 2'); a(f's_and_b32 s{sKSP}, s{sKSP}, 15')
    chunk(True, 1)
    a(f's_mov_b32 s{sKS}, s{sB}')
    for c in wo_block_loads(WB[0], sKS): c()
    inc_ks(sKS)
    for c in wo_block_loads(WB[1], sKS): c()
    a(f's_mov_b32 s{sKS}, s{sB}')

    for qt in range(4):
        a(f'v_mov_b32 v{V_M+qt}, v{V_L+qt}')
    for qt in range(4):
        a(f'v_permlane32_swap_b32 v{V_L+qt}, v{V_M+qt}')
    for qt in range(4):
        a(f'v_add_f32 v{V_L+qt}, v{V_L+qt}, v{V_M+qt}')
    for qt in range(4):
        a(f'v_mov_b32 v{V_M+qt}, v{V_L+qt}')
    for qt in range(4):
        a(f'v_permlane16_swap_b32 v{V_L+qt}, v{V_M+qt}')
    for qt in range(4):
        a(f'v_add_f32 v{V_L+qt}, v{V_L+qt}, v{V_M+qt}')
    for qt in range(4):
        a(f'v_rcp_f32 v{V_AL+qt}, v{V_L+qt}')
    a(f's_lshl_b32 s{sT0}, s{sW}, 14')
    a(f's_add_u32 s{sT0}, s{sT0}, {LDS_O}')
    a(f'v_add_u32 v{V_XR}, s{sT0}, v{V_ST}')
    for qt in range(4):
        for r in range(4):
            for f in range(8):
                a(f'v_accvgpr_read_b32 v{V_TMP+f}, a{ACC + (f*4 + qt)*4 + r}')
            for f in range(8):
                a(f'v_mul_f32 v{V_TMP+f}, v{V_TMP+f}, v{V_AL+qt}')
            d = Q + (qt*4 + r)*4
            for fp in range(4):
                a(f'v_cvt_pk_bf16_f32 v{d+fp}, v{V_TMP+2*fp}, v{V_TMP+2*fp+1}')
            a(f'ds_write_b128 v{V_XR}, {vr(d)} offset:{(r*4+qt)*1024}')
    for i in range(128):
        a(f'v_accvgpr_write_b32 a{ACC+i}, 0')
    a.wait(lg=0)
    a('s_barrier')

    a(f'v_add_u32 v{V_ST}, {LDS_O}, v{V_ST}')
    for c in bfrag_reads(0, 0, sKS):
        c()
    a.wait(vm=0)
    a(f's_add_u32 s{sKSP}, s{sB}, 4'); a(f's_and_b32 s{sKSP}, s{sKSP}, 15')
    a.vm = [set(('v', WB[u] + 4*i + k) for k in range(4)) for u in range(4) for i in range(8)]
    proj_phase('p3', 0, lambda u, sks: wo_block_loads(WB[u], sks), lambda u: [])
    a(f'v_subrev_u32 v{V_ST}, {LDS_O}, v{V_ST}')
    if not part_bf16:
        for t in range(32):
            if t % 4 == 0:
                a(f's_mov_b32 s{sT0}, {t*1024}')
            a(f'buffer_store_dwordx4 {ar(ACC + t*4)}, v{V_ST}, s[{sWS}:{sWS+3}], s{sT0} offen offset:{(t%4)*1024}')
    else:
        for qt in range(4):
            a(f's_mov_b32 s{sT0}, {qt*4096}')
            for r in range(4):
                d = Q + (qt*4 + r)*4
                for f in range(8):
                    a(f'v_accvgpr_read_b32 v{V_TMP+f}, a{ACC + (f*4 + qt)*4 + r}')
                for fp in range(4):
                    a(f'v_cvt_pk_bf16_f32 v{d+fp}, v{V_TMP+2*fp}, v{V_TMP+2*fp+1}')
                a(f'buffer_store_dwordx4 {vr(d)}, v{V_ST}, s[{sWS}:{sWS+3}], s{sT0} offen offset:{r*1024}')
    if stamps:
        a.wait(vm=0)
        a('s_memrealtime s[92:93]')
        a('s_mov_b32 s84, s40'); a('s_and_b32 s85, s41, 0xffff'); a('s_mov_b32 s86, 0x100000'); a('s_mov_b32 s87, 0x20000')
        a(f's_lshl_b32 s{sT0}, s2, 2'); a(f's_add_u32 s{sT0}, s{sT0}, s{sW}'); a(f's_lshl_b32 s{sT0}, s{sT0}, 4')
        a.wait(lg=0)
        a('v_mov_b32 v16, s90'); a('v_mov_b32 v17, s91'); a('v_mov_b32 v18, s92'); a('v_mov_b32 v19, s93')
        a('v_mov_b32 v20, 0')
        a('s_mov_b64 exec, 1')
        a(f'buffer_store_dwordx4 v[16:19], v20, s[84:87], s{sT0} offen')
    a.label('L_end')
    a('s_endpgm')

    r = Asm()
    r.raw('.globl reduce_kernel'); r.raw('.p2align 8'); r.raw('.type reduce_kernel,@function')
    r.label('reduce_kernel')
    r('s_cmp_ge_u32 s2, 256'); r('s_cbranch_scc1 L_rend')
    r('s_load_dwordx2 s[4:5], s[0:1], 80')
    r('s_load_dwordx2 s[6:7], s[0:1], 96')
    r('v_lshrrev_b32 v1, 6, v0'); r('v_readfirstlane_b32 s3, v1')
    r('v_and_b32 v1, 63, v0'); r('v_lshlrev_b32 v2, 4, v1')
    r('s_lshl_b32 s8, s2, 2'); r('s_add_u32 s8, s8, s3')
    r('s_lshr_b32 s9, s8, 5')
    r('s_lshr_b32 s10, s8, 3'); r('s_and_b32 s10, s10, 3')
    r('s_lshr_b32 s11, s8, 1'); r('s_and_b32 s11, s11, 3')
    r('s_and_b32 s12, s8, 1')
    r.wait(lg=0)
    r('s_add_u32 s16, s6, 0x100000'); r('s_addc_u32 s17, s7, 0'); r('s_and_b32 s17, s17, 0xffff')
    r(f's_mov_b32 s18, {psz*1024}'); r('s_mov_b32 s19, 0x20000')
    r('s_mov_b32 s20, s4'); r('s_and_b32 s21, s5, 0xffff'); r('s_mov_b32 s22, 0x200000'); r('s_mov_b32 s23, 0x20000')
    r('s_and_b32 s24, s9, 15'); r('s_lshl_b32 s24, s24, 17')
    r('s_lshr_b32 s25, s9, 4'); r('s_lshl_b32 s25, s25, 10'); r('s_add_u32 s24, s24, s25')
    r('s_lshl_b32 s25, s11, 15'); r('s_add_u32 s24, s24, s25')
    r('s_lshl_b32 s25, s10, 8'); r('s_add_u32 s24, s24, s25')
    r('v_and_b32 v3, 15, v1'); r('v_lshlrev_b32 v3, 11, v3'); r('v_lshrrev_b32 v4, 4, v1'); r('v_lshl_add_u32 v3, v4, 6, v3')
    if not part_bf16:
        r('s_lshl_b32 s13, s9, 20'); r('s_lshl_b32 s14, s10, 15'); r('s_add_u32 s13, s13, s14')
        r('s_lshl_b32 s14, s11, 10'); r('s_add_u32 s13, s13, s14')
        r('s_lshl_b32 s14, s12, 14'); r('s_add_u32 s13, s13, s14')
        for p in range(8):
            for ff in range(4):
                r(f's_add_u32 s14, s13, {p*131072 + ff*4096}')
                r(f'buffer_load_dwordx4 {vr(16 + (p*4+ff)*4)}, v2, s[16:19], s14 offen')
        for p in range(1, 8):
            for k in range(16):
                r(f'v_add_f32 v{16+k}, v{16+k}, v{16 + p*16 + k}')
        r('s_lshl_b32 s25, s12, 3'); r('s_add_u32 s24, s24, s25')
        for rr in range(4):
            r(f'v_cvt_pk_bf16_f32 v{8+2*rr}, v{16+rr}, v{20+rr}')
            r(f'v_cvt_pk_bf16_f32 v{9+2*rr}, v{24+rr}, v{28+rr}')
            r(f'buffer_store_dwordx2 v[{8+2*rr}:{9+2*rr}], v3, s[20:23], s24 offen offset:{rr*16}')
    else:
        r('s_lshl_b32 s13, s9, 19'); r('s_lshl_b32 s14, s10, 14'); r('s_add_u32 s13, s13, s14')
        r('s_lshl_b32 s14, s11, 12'); r('s_add_u32 s13, s13, s14')
        r('s_lshl_b32 s14, s12, 11'); r('s_add_u32 s13, s13, s14')
        for p in range(8):
            r(f's_add_u32 s14, s13, {p*65536}')
            for rr in range(2):
                r(f'buffer_load_dwordx4 {vr(32 + (p*2+rr)*4)}, v2, s[16:19], s14 offen offset:{rr*1024}')
        r('s_mov_b32 s26, 0xffff0000')
        for p in range(8):
            for k in range(8):
                src = 32 + p*8 + k
                if p == 0:
                    r(f'v_lshlrev_b32 v{16+2*k}, 16, v{src}')
                    r(f'v_and_b32 v{17+2*k}, s26, v{src}')
                else:
                    r(f'v_lshlrev_b32 v8, 16, v{src}')
                    r(f'v_and_b32 v9, s26, v{src}')
                    r(f'v_add_f32 v{16+2*k}, v{16+2*k}, v8')
                    r(f'v_add_f32 v{17+2*k}, v{17+2*k}, v9')
        r('s_lshl_b32 s25, s12, 5'); r('s_add_u32 s24, s24, s25')
        for rr in range(2):
            for k in range(4):
                r(f'v_cvt_pk_bf16_f32 v{8+rr*4+k}, v{16+rr*8+2*k}, v{17+rr*8+2*k}')
            r(f'buffer_store_dwordx4 {vr(8+rr*4)}, v3, s[20:23], s24 offen offset:{rr*16}')
    r.label('L_rend')
    r('s_endpgm')

    def desc(name, nv, acc):
        return '\n'.join([
            f'.amdhsa_kernel {name}',
            f'  .amdhsa_next_free_vgpr {nv}', '  .amdhsa_next_free_sgpr 102', f'  .amdhsa_accum_offset {acc}',
            '  .amdhsa_group_segment_fixed_size 0', '  .amdhsa_kernarg_size 104', '  .amdhsa_user_sgpr_count 2',
            '  .amdhsa_user_sgpr_kernarg_segment_ptr 1', '  .amdhsa_system_sgpr_workgroup_id_x 1', '.end_amdhsa_kernel'])
    tail = '.section .rodata,"a"\n.p2align 6\n' + desc(f'{NAME}_kernel', 512, 256) + '\n.p2align 6\n' + desc('reduce_kernel', 144, 144) + '\n'
    return a.text() + r.text() + tail


if __name__ == '__main__':
    import argparse
    ap = argparse.ArgumentParser()
    ap.add_argument('-o', default='k1.s')
    ap.add_argument('--kv', default='nt'); ap.add_argument('--w', default='')
    ap.add_argument('--stamps', action='store_true'); ap.add_argument('--bf16p', action='store_true')
    args = ap.parse_args()
    open(args.o, 'w').write(gen(args.kv, args.w, args.stamps, args.bf16p))
```

```python
import sys, struct, math
sys.path.insert(0, 'work')
from asmfw import Asm

NAME = "concat_heads__gqa_block_cached__mha_block_cached__near_ridge"
HEADER = open('cdna_kernels/' + NAME + '.s.ref').read().split('; Override launch')[0]


def f32bits(x):
    return '0x%08x' % struct.unpack('<I', struct.pack('<f', x))[0]


def vr(b, n=4): return f'v[{b}:{b+n-1}]'
def ar(b, n=4): return f'a[{b}:{b+n-1}]'

V_LANE, V_K, V_V, V_WQ, V_WO, V_XR, V_XA, V_T0, V_T1, V_ST = 1, 2, 3, 4, 5, 6, 7, 8, 9, 10
V_MC = 11
V_X, V_Y = 12, 13
V_T2, V_T3 = 14, 15
F = 16
BF = 32
V_NM = 32
V_L = 36
V_M = 40
V_AL = 44
V_TMP = 48
S = 64
VS = 128
Q = 192
ACC = 0
KS = 128

sW, sB, sHG, sH, sISA = 3, 4, 5, 6, 7
sX, sWQ, sK, sV, sWO, sWS = 44, 48, 52, 56, 60, 64
sSELL, sSELH, sC = 68, 69, 70
sT0, sT1, sT2, sT3 = 71, 72, 73, 74
sKS, sKSP, sCNT, sKOFF, sVOFF, sHOFF = 75, 76, 77, 78, 79, 80
sWOB = 81

LDS_X = 0
LDS_O = 65536


def gen(kv_pol='nt', w_pol='', stamps=False, part_bf16=False, extra_launch=0):
    a = Asm()
    kvp = (' ' + kv_pol) if kv_pol else ''
    wp = (' ' + w_pol) if w_pol else ''
    a.raw(HEADER.rstrip())
    a.raw(f"; @launch kernel={NAME}_kernel grid=(256,1,1) block=(256,1,1) lds=131072")
    a.raw(f"; @launch kernel=reduce_kernel grid=(256,1,1) block=(256,1,1) lds=0")
    for _ in range(extra_launch):
        a.raw(f"; @launch kernel=reduce_kernel grid=(256,1,1) block=(256,1,1) lds=0")
    if stamps:
        a.raw("; pstamps=1024")
    a.raw('.amdgcn_target "amdgcn-amd-amdhsa--gfx950"')
    a.raw('.text')
    a.raw(f'.globl {NAME}_kernel')
    a.raw('.p2align 8')
    a.raw(f'.type {NAME}_kernel,@function')
    a.label(f'{NAME}_kernel')
    a('s_cmp_ge_u32 s2, 256')
    a('s_cbranch_scc1 L_end')
    def stamp(i):
        if stamps:
            a.wait(lg=0)
            a('s_memrealtime s[98:99]')
            a.wait(lg=0)
            a(f's_mov_b32 s{88+i}, s98')
    stamp(0)
    a('s_load_dwordx16 s[16:31], s[0:1], 0')
    a('s_load_dwordx8 s[32:39], s[0:1], 64')
    a('s_load_dwordx2 s[40:41], s[0:1], 96')
    a('v_lshrrev_b32 v1, 6, v0')
    a(f'v_readfirstlane_b32 s{sW}, v1')
    a(f'v_and_b32 v{V_LANE}, 63, v0')
    a(f's_lshr_b32 s{sT0}, s2, 3')
    a(f's_lshr_b32 s{sISA}, s{sT0}, 4')
    a(f's_and_b32 s{sB}, s{sT0}, 7')
    a(f's_and_b32 s{sT1}, s2, 1'); a(f's_lshl_b32 s{sT1}, s{sT1}, 3'); a(f's_add_u32 s{sB}, s{sB}, s{sT1}')
    a(f's_and_b32 s{sHG}, s2, 6')
    a(f's_lshr_b32 s{sT1}, s{sT0}, 3'); a(f's_and_b32 s{sT1}, s{sT1}, 1'); a(f's_add_u32 s{sHG}, s{sHG}, s{sT1}')
    a(f's_lshl_b32 s{sT1}, s{sISA}, 1'); a(f's_add_u32 s{sHG}, s{sHG}, s{sT1}'); a(f's_and_b32 s{sHG}, s{sHG}, 7')
    a(f's_lshl_b32 s{sH}, s{sHG}, 2')
    a(f's_add_u32 s{sH}, s{sH}, s{sW}')
    a(f's_mov_b32 s{sSELL}, 0x05040100')
    a(f's_mov_b32 s{sSELH}, 0x07060302')
    cval = (128 ** -0.5) * math.log2(math.e)
    a(f's_mov_b32 s{sC}, {f32bits(cval)}')
    a(f'v_and_b32 v{V_T0}, 15, v{V_LANE}')
    a(f'v_lshrrev_b32 v{V_T1}, 4, v{V_LANE}')
    a(f'v_lshlrev_b32 v{V_K}, 8, v{V_T0}')
    a(f'v_lshl_add_u32 v{V_K}, v{V_T1}, 4, v{V_K}')
    a(f'v_lshlrev_b32 v{V_V}, 10, v{V_T1}')
    a(f'v_lshl_add_u32 v{V_V}, v{V_T0}, 4, v{V_V}')
    a(f'v_and_b32 v{V_T2}, 3, v{V_T0}')
    a(f'v_lshlrev_b32 v{V_T2}, 2, v{V_T2}')
    a(f'v_lshrrev_b32 v{V_T3}, 2, v{V_T0}')
    a(f'v_add_u32 v{V_T2}, v{V_T2}, v{V_T3}')
    a(f'v_lshlrev_b32 v{V_WQ}, 16, v{V_T1}')
    a(f'v_lshl_add_u32 v{V_WQ}, v{V_T2}, 4, v{V_WQ}')
    a(f'v_lshlrev_b32 v{V_WO}, 15, v{V_T1}')
    a(f'v_lshl_add_u32 v{V_WO}, v{V_T0}, 4, v{V_WO}')
    a(f'v_lshlrev_b32 v{V_XA}, 10, v{V_T0}')
    a(f'v_lshl_add_u32 v{V_XA}, v{V_T1}, 4, v{V_XA}')
    a(f'v_lshlrev_b32 v{V_ST}, 4, v{V_LANE}')
    a.wait(lg=0)
    a(f's_cmp_eq_u32 s{sISA}, 1')
    def sel(dst, pa, pb):
        a(f's_cselect_b32 s{dst}, s{pa}, s{pb}')
        a(f's_cselect_b32 s{dst+1}, s{pa+1}, s{pb+1}')
    sel(sX, 16, 26); sel(sK, 18, 28); sel(sV, 20, 30); sel(sWQ, 22, 32); sel(sWO, 24, 34)
    a(f's_lshl_b32 s{sT0}, s{sB}, 3'); a(f's_add_u32 s{sT0}, s{sT0}, s{sHG}')
    a(f's_lshl_b32 s{sT1}, s{sB}, 5'); a(f's_add_u32 s{sT1}, s{sT1}, s{sH}')
    a(f's_cmp_eq_u32 s{sISA}, 1')
    a(f's_cselect_b32 s{sT0}, s{sT0}, s{sT1}')
    a(f's_lshl_b32 s{sT0}, s{sT0}, 17')
    for sr in (sK, sV):
        a(f's_add_u32 s{sr}, s{sr}, s{sT0}'); a(f's_addc_u32 s{sr+1}, s{sr+1}, 0')
    a(f's_lshl_b32 s{sT0}, s{sB}, 16')
    a(f's_add_u32 s{sX}, s{sX}, s{sT0}'); a(f's_addc_u32 s{sX+1}, s{sX+1}, 0')
    for sr, size in ((sX, 65536), (sWQ, 4 << 20), (sK, 131072), (sV, 131072), (sWO, 4 << 20)):
        a(f's_and_b32 s{sr+1}, s{sr+1}, 0xffff')
        a(f's_mov_b32 s{sr+2}, {size}')
        a(f's_mov_b32 s{sr+3}, 0x20000')
    psz = 16384 if part_bf16 else 32768
    a(f's_xor_b32 s{sT0}, s{sISA}, 1'); a(f's_lshl_b32 s{sT0}, s{sT0}, 4'); a(f's_add_u32 s{sT0}, s{sT0}, s{sB}')
    a(f's_lshl_b32 s{sT0}, s{sT0}, 3'); a(f's_add_u32 s{sT0}, s{sT0}, s{sHG}')
    a(f's_lshl_b32 s{sT0}, s{sT0}, 2'); a(f's_add_u32 s{sT0}, s{sT0}, s{sW}')
    a(f's_mul_i32 s{sT0}, s{sT0}, {psz}')
    a(f's_add_u32 s{sT0}, s{sT0}, 0x100000')
    a(f's_add_u32 s{sWS}, s40, s{sT0}'); a(f's_addc_u32 s{sWS+1}, s41, 0')
    a(f's_and_b32 s{sWS+1}, s{sWS+1}, 0xffff'); a(f's_mov_b32 s{sWS+2}, {psz}'); a(f's_mov_b32 s{sWS+3}, 0x20000')
    a(f's_lshl_b32 s{sHOFF}, s{sH}, 8')
    a(f's_lshl_b32 s{sWOB}, s{sHG}, 19'); a(f's_lshl_b32 s{sT0}, s{sW}, 8'); a(f's_add_u32 s{sWOB}, s{sWOB}, s{sT0}')

    a(f's_lshl_b32 s{sT0}, s{sW}, 14')
    a(f's_lshl_b32 s{sT1}, s{sW}, 10')
    for ks in range(16):
        a(f's_add_u32 m0, s{sT1}, {LDS_X + ks*4096}')
        a(f'buffer_load_dwordx4 v{V_XA}, s[{sX}:{sX+3}], s{sT0} offen{wp} lds')
        a(f's_add_u32 s{sT0}, s{sT0}, 64')

    WB = [S, S + 32, VS, VS + 32]

    def wq_block_loads(slot, sks):
        L = []
        def first():
            a(f's_lshl_b32 s{sT2}, s{sks}, 18')
            a(f's_add_u32 s{sT2}, s{sT2}, s{sHOFF}')
            a(f'buffer_load_dwordx4 {vr(WB[slot])}, v{V_WQ}, s[{sWQ}:{sWQ+3}], s{sT2} offen{wp}')
        L.append(first)
        for i in range(1, 8):
            def nxt(i=i):
                a(f's_add_u32 s{sT2}, s{sT2}, 8192')
                a(f'buffer_load_dwordx4 {vr(WB[slot] + 4*i)}, v{V_WQ}, s[{sWQ}:{sWQ+3}], s{sT2} offen{wp}')
            L.append(nxt)
        return L

    def wo_block_loads(base, sks):
        L = []
        for i in range(8):
            def ld(i=i):
                if i == 0:
                    a(f's_lshr_b32 s{sT2}, s{sks}, 2'); a(f's_lshl_b32 s{sT2}, s{sT2}, 17')
                    a(f's_and_b32 s{sT3}, s{sks}, 3'); a(f's_lshl_b32 s{sT3}, s{sT3}, 13')
                    a(f's_add_u32 s{sT2}, s{sT2}, s{sT3}'); a(f's_add_u32 s{sT2}, s{sT2}, s{sWOB}')
                if i == 4:
                    a(f's_add_u32 s{sT2}, s{sT2}, 4096')
                a(f'buffer_load_dwordx4 {vr(base + 4*i)}, v{V_WO}, s[{sWO}:{sWO+3}], s{sT2} offen offset:{(i&3)*1024}{wp}')
            L.append(ld)
        return L

    def k_load(kt, s):
        def ld():
            if s == 0:
                a(f's_add_u32 s{sT0}, s{sKOFF}, {kt*4096}')
            a(f'buffer_load_dwordx4 {ar(KS + (kt*4+s)*4)}, v{V_K}, s[{sK}:{sK+3}], s{sT0} offen offset:{64*s}{kvp}')
        return ld

    def v_load(g, i):
        def ld():
            if i % 4 == 0:
                a(f's_add_u32 s{sT1}, s{sVOFF}, {g*8192 + (i//4)*4096}')
            a(f'buffer_load_dwordx4 {vr(VS + (g*8+i)*4)}, v{V_V}, s[{sV}:{sV+3}], s{sT1} offen offset:{(i%4)*256}{kvp}')
        return ld

    def perms(blk, fp, fset):
        L = []
        for half, sel_ in ((0, sSELL), (1, sSELH)):
            for p in range(4):
                def pm(half=half, sel_=sel_, p=p):
                    a(f'v_perm_b32 v{F + fset*8 + half*4 + p}, v{blk + (2*p+1)*4 + fp}, v{blk + (2*p)*4 + fp}, s{sel_}')
                L.append(pm)
        return L

    def gemm_block(blk, bfr, post=(), fill=()):
        post = list(post); fill = list(fill)
        for pm in perms(blk, 0, 0):
            pm()
        for fp in range(4):
            nxt = perms(blk, fp + 1, (fp + 1) & 1) if fp < 3 else post
            nxt = list(nxt)
            for half in range(2):
                f = 2*fp + half
                for qt in range(4):
                    acc = ACC + (f*4 + qt)*4
                    a(f'v_mfma_f32_16x16x32_bf16 {ar(acc)}, {vr(F + (fp&1)*8 + half*4)}, {vr(bfr[qt])}, {ar(acc)}')
                    if nxt:
                        nxt.pop(0)()
                    if fill:
                        fill.pop(0)()
            for c in nxt:
                c()
        for c in fill:
            c()

    def bfrag_reads(buf, lds_base, sks):
        L = []
        def adr():
            a(f's_lshl_b32 s{sT3}, s{sks}, 12')
            a(f'v_add_u32 v{V_XR}, s{sT3}, v{V_ST}')
        L.append(adr)
        for qt in range(4):
            def rd(qt=qt):
                a(f'ds_read_b128 {vr(BF + buf*16 + qt*4)}, v{V_XR} offset:{lds_base + qt*1024}')
            L.append(rd)
        return L

    def inc_ks(s):
        a(f's_add_u32 s{s}, s{s}, 1'); a(f's_and_b32 s{s}, s{s}, 15')

    def proj_phase(tag, lds_base, block_loads, last_fill):
        assert lds_base < 65536 or True
        def step(u, last):
            fill = []
            if not (last and u == 3):
                inc_ks(sKS)
                fill = bfrag_reads((u + 1) & 1, lds_base, sKS)
            if not last:
                post = block_loads(u, sKSP) + [lambda: inc_ks(sKSP)]
            else:
                post = last_fill(u)
            extra = extra_fill(u, last)
            gemm_block(WB[u], [BF + (u & 1)*16 + qt*4 for qt in range(4)], post=post, fill=fill + extra)
        a(f's_mov_b32 s{sCNT}, 3')
        a.flush_hazards()
        st0 = a.state()
        a.label(f'L_{tag}')
        for u in range(4):
            step(u, False)
        a(f's_sub_u32 s{sCNT}, s{sCNT}, 1')
        a(f's_cmp_lg_u32 s{sCNT}, 0')
        a.flush_hazards()
        st1 = a.state()
        a(f's_cbranch_scc1 L_{tag}')
        check_states(st0, st1, tag)
        for u in range(4):
            step(u, True)

    def check_states(st0, st1, tag):
        n = min(len(st0[0]), len(st1[0]))
        assert len(st0[0]) >= len(st1[0]) and st0[0][len(st0[0]) - n:] == st1[0][len(st1[0]) - n:], (tag, 'vm', len(st0[0]), len(st1[0]))
        n = min(len(st0[1]), len(st1[1]))
        assert len(st0[1]) == len(st1[1]) and st0[1] == st1[1], (tag, 'lg', st0[1], st1[1])

    a(f's_mov_b32 s{sKS}, s{sB}')
    a(f's_mov_b32 s{sKSP}, s{sB}')
    a(f's_mov_b32 s{sKOFF}, 0')
    a(f's_mov_b32 s{sVOFF}, 0')
    for u in range(4):
        for c in wq_block_loads(u, sKSP):
            c()
        inc_ks(sKSP)
    for i in range(128):
        a(f'v_accvgpr_write_b32 a{ACC+i}, 0')
    a.wait(vm=32)
    a('s_barrier')
    for c in bfrag_reads(0, LDS_X, sKS):
        c()
    extra_fill = lambda u, last: []
    def p1_last(u):
        L = []
        if u == 0:
            L += [k_load(kt, s) for kt in range(2) for s in range(4)]
        if u == 1:
            L += [k_load(kt, s) for kt in range(2, 4) for s in range(4)]
        if u == 2:
            L += [v_load(0, i) for i in range(8)]
        if u == 3:
            L += [v_load(1, i) for i in range(8)]
        return L
    proj_phase('p1', LDS_X, lambda u, sks: wq_block_loads(u, sks), p1_last)
    stamp(1)
    for qt in range(4):
        for r in range(4):
            for fp in range(4):
                t0 = V_TMP + (fp*2) % 16; t1 = t0 + 1
                a(f'v_accvgpr_read_b32 v{t0}, a{ACC + ((2*fp)*4 + qt)*4 + r}')
                a(f'v_accvgpr_read_b32 v{t1}, a{ACC + ((2*fp+1)*4 + qt)*4 + r}')
                a(f'v_cvt_pk_bf16_f32 v{Q + (qt*4 + r)*4 + fp}, v{t0}, v{t1}')
    for i in range(128):
        a(f'v_accvgpr_write_b32 a{ACC+i}, 0')
    a(f'v_mov_b32 v{V_MC}, {f32bits(-3.0e38)}')
    for qt in range(4):
        a(f'v_mov_b32 v{V_L+qt}, 0')
        a(f'v_mov_b32 v{V_NM+qt}, 0')


    def chunk(last, idx):
        if not last:
            a(f's_add_u32 s{sKOFF}, s{sKOFF}, 16384')
        for kt in range(4):
            for s in range(4):
                for qt in range(4):
                    sreg = S + (kt*4 + qt)*4
                    c = '0' if s == 0 else vr(sreg)
                    a(f'v_mfma_f32_16x16x32_bf16 {vr(sreg)}, {ar(KS + (kt*4+s)*4)}, {vr(Q + (qt*4+s)*4)}, {c}')
                if not last:
                    k_load(kt, s)()
        for qt in range(4):
            vals = [S + (kt*4 + qt)*4 + r for kt in range(4) for r in range(4)]
            a(f'v_max3_f32 v{V_M+qt}, v{vals[0]}, v{vals[1]}, v{vals[2]}')
            for i in range(3, 15, 2):
                a(f'v_max3_f32 v{V_M+qt}, v{V_M+qt}, v{vals[i]}, v{vals[i+1]}')
            a(f'v_max_f32 v{V_M+qt}, v{V_M+qt}, v{vals[15]}')
        a(f'v_permlane32_swap_b32 v{V_M}, v{V_M+1}')
        a(f'v_permlane32_swap_b32 v{V_M+2}, v{V_M+3}')
        a(f'v_max_f32 v{V_X}, v{V_M}, v{V_M+1}')
        a(f'v_max_f32 v{V_Y}, v{V_M+2}, v{V_M+3}')
        a(f'v_permlane16_swap_b32 v{V_X}, v{V_Y}')
        a(f'v_max_f32 v{V_X}, v{V_X}, v{V_Y}')
        a(f'v_mul_f32 v{V_X}, s{sC}, v{V_X}')
        a(f'v_sub_f32 v{V_Y}, v{V_X}, v{V_MC}')
        a(f'v_cmp_lt_f32 vcc, {f32bits(8.0)}, v{V_Y}')
        a.nop(1)
        a(f's_cbranch_vccz L_fast{idx}')
        st = a.state()
        a(f'v_max_f32 v{V_X}, v{V_X}, v{V_MC}')
        a(f'v_sub_f32 v{V_Y}, v{V_MC}, v{V_X}')
        a(f'v_exp_f32 v{V_Y}, v{V_Y}')
        a(f'v_mov_b32 v{V_MC}, v{V_X}')
        a(f'v_sub_f32 v{V_X}, 0, v{V_X}')
        def expand(src, dst):
            a(f'v_mov_b32 v{dst+0}, v{src}')
            a(f'v_mov_b32 v{dst+2}, v{src}')
            a(f'v_permlane16_swap_b32 v{dst+0}, v{dst+2}')
            a(f'v_mov_b32 v{dst+1}, v{dst+0}')
            a(f'v_mov_b32 v{dst+3}, v{dst+2}')
            a(f'v_permlane32_swap_b32 v{dst+0}, v{dst+1}')
            a(f'v_permlane32_swap_b32 v{dst+2}, v{dst+3}')
        expand(V_X, V_NM)
        expand(V_Y, V_AL)
        for qt in range(4):
            a(f'v_mul_f32 v{V_L+qt}, v{V_L+qt}, v{V_AL+qt}')
        for f in range(8):
            for qt in range(4):
                for r in range(4):
                    t = V_TMP + (qt*4 + r)
                    a(f'v_accvgpr_read_b32 v{t}, a{ACC + (f*4+qt)*4 + r}')
            for qt in range(4):
                for r in range(4):
                    t = V_TMP + (qt*4 + r)
                    a(f'v_mul_f32 v{t}, v{t}, v{V_AL+qt}')
            for qt in range(4):
                for r in range(4):
                    t = V_TMP + (qt*4 + r)
                    a(f'v_accvgpr_write_b32 a{ACC + (f*4+qt)*4 + r}, v{t}')
        a.flush_hazards()
        assert a.state() == st
        a.label(f'L_fast{idx}')
        for g in range(2):
            for qt in range(4):
                for kt in (2*g, 2*g + 1):
                    b = S + (kt*4 + qt)*4
                    for r in range(4):
                        a(f'v_fma_f32 v{b+r}, v{b+r}, s{sC}, v{V_NM+qt}')
                    for r in range(4):
                        a(f'v_exp_f32 v{b+r}, v{b+r}')
                    for r in range(4):
                        a(f'v_add_f32 v{V_L+qt}, v{V_L+qt}, v{b+r}')
                    d = S + ((2*g)*4 + qt)*4 + (kt & 1)*2
                    a(f'v_cvt_pk_bf16_f32 v{d}, v{b}, v{b+1}')
                    a(f'v_cvt_pk_bf16_f32 v{d+1}, v{b+2}, v{b+3}')
        if not last:
            a(f's_add_u32 s{sVOFF}, s{sVOFF}, 16384')
        for g in range(2):
            if not last:
                post = [v_load(g, i) for i in range(8)]
            else:
                post = wo_block_loads(WB[2 + g], sKSP) + [lambda: inc_ks(sKSP)]
            gemm_block(VS + g*32, [S + ((2*g)*4 + qt)*4 for qt in range(4)], post=post)

    stamp(2)
    a(f's_mov_b32 s{sCNT}, 7')
    a.flush_hazards()
    st0 = a.state()
    a.label('L_p2')
    chunk(False, 0)
    a(f's_sub_u32 s{sCNT}, s{sCNT}, 1')
    a(f's_cmp_lg_u32 s{sCNT}, 0')
    a.flush_hazards()
    st1 = a.state()
    a('s_cbranch_scc1 L_p2')
    check_states(st0, st1, 'p2')
    a(f's_add_u32 s{sKSP}, s{sB}, 2'); a(f's_and_b32 s{sKSP}, s{sKSP}, 15')
    chunk(True, 1)
    a(f's_mov_b32 s{sKS}, s{sB}')
    for c in wo_block_loads(WB[0], sKS): c()
    inc_ks(sKS)
    for c in wo_block_loads(WB[1], sKS): c()
    a(f's_mov_b32 s{sKS}, s{sB}')

    stamp(3)
    for qt in range(4):
        a(f'v_mov_b32 v{V_M+qt}, v{V_L+qt}')
    for qt in range(4):
        a(f'v_permlane32_swap_b32 v{V_L+qt}, v{V_M+qt}')
    for qt in range(4):
        a(f'v_add_f32 v{V_L+qt}, v{V_L+qt}, v{V_M+qt}')
    for qt in range(4):
        a(f'v_mov_b32 v{V_M+qt}, v{V_L+qt}')
    for qt in range(4):
        a(f'v_permlane16_swap_b32 v{V_L+qt}, v{V_M+qt}')
    for qt in range(4):
        a(f'v_add_f32 v{V_L+qt}, v{V_L+qt}, v{V_M+qt}')
    for qt in range(4):
        a(f'v_rcp_f32 v{V_AL+qt}, v{V_L+qt}')
    a(f's_lshl_b32 s{sT0}, s{sW}, 14')
    a(f's_add_u32 s{sT0}, s{sT0}, {LDS_O}')
    a(f'v_add_u32 v{V_XR}, s{sT0}, v{V_ST}')
    for qt in range(4):
        for r in range(4):
            for f in range(8):
                a(f'v_accvgpr_read_b32 v{V_TMP+f}, a{ACC + (f*4 + qt)*4 + r}')
            for f in range(8):
                a(f'v_mul_f32 v{V_TMP+f}, v{V_TMP+f}, v{V_AL+qt}')
            d = Q + (qt*4 + r)*4
            for fp in range(4):
                a(f'v_cvt_pk_bf16_f32 v{d+fp}, v{V_TMP+2*fp}, v{V_TMP+2*fp+1}')
            a(f'ds_write_b128 v{V_XR}, {vr(d)} offset:{(r*4+qt)*1024}')
    for i in range(128):
        a(f'v_accvgpr_write_b32 a{ACC+i}, 0')
    a.wait(lg=0)
    a('s_barrier')

    stamp(4)
    a(f'v_add_u32 v{V_ST}, {LDS_O}, v{V_ST}')
    for c in bfrag_reads(0, 0, sKS):
        c()
    a.wait(vm=0)
    a(f's_add_u32 s{sKSP}, s{sB}, 4'); a(f's_and_b32 s{sKSP}, s{sKSP}, 15')
    a.vm = [set(('v', WB[u] + 4*i + k) for k in range(4)) for u in range(4) for i in range(8)]
    proj_phase('p3', 0, lambda u, sks: wo_block_loads(WB[u], sks), lambda u: [])
    a(f'v_subrev_u32 v{V_ST}, {LDS_O}, v{V_ST}')
    stamp(5)
    if not part_bf16:
        for t in range(32):
            if t % 4 == 0:
                a(f's_mov_b32 s{sT0}, {t*1024}')
            a(f'buffer_store_dwordx4 {ar(ACC + t*4)}, v{V_ST}, s[{sWS}:{sWS+3}], s{sT0} offen offset:{(t%4)*1024}')
    else:
        for qt in range(4):
            a(f's_mov_b32 s{sT0}, {qt*4096}')
            for r in range(4):
                d = Q + (qt*4 + r)*4
                for f in range(8):
                    a(f'v_accvgpr_read_b32 v{V_TMP+f}, a{ACC + (f*4 + qt)*4 + r}')
                for fp in range(4):
                    a(f'v_cvt_pk_bf16_f32 v{d+fp}, v{V_TMP+2*fp}, v{V_TMP+2*fp+1}')
                a(f'buffer_store_dwordx4 {vr(d)}, v{V_ST}, s[{sWS}:{sWS+3}], s{sT0} offen offset:{r*1024}')
    if stamps:
        a.wait(vm=0)
        stamp(6)
        a('s_mov_b32 s84, s40'); a('s_and_b32 s85, s41, 0xffff'); a('s_mov_b32 s86, 0x100000'); a('s_mov_b32 s87, 0x20000')
        a(f's_lshl_b32 s{sT0}, s2, 2'); a(f's_add_u32 s{sT0}, s{sT0}, s{sW}'); a(f's_lshl_b32 s{sT0}, s{sT0}, 5')
        for i in range(8):
            a(f'v_mov_b32 v{16+i}, s{88+min(i,6)}')
        a('v_mov_b32 v28, 0')
        a('s_mov_b64 exec, 1')
        a(f'buffer_store_dwordx4 v[16:19], v28, s[84:87], s{sT0} offen')
        a(f'buffer_store_dwordx4 v[20:23], v28, s[84:87], s{sT0} offen offset:16')
    a.label('L_end')
    a('s_endpgm')

    r = Asm()
    r.raw('.globl reduce_kernel'); r.raw('.p2align 8'); r.raw('.type reduce_kernel,@function')
    r.label('reduce_kernel')
    r('s_cmp_ge_u32 s2, 256'); r('s_cbranch_scc1 L_rend')
    r('s_load_dwordx2 s[4:5], s[0:1], 80')
    r('s_load_dwordx2 s[6:7], s[0:1], 96')
    r('v_lshrrev_b32 v1, 6, v0'); r('v_readfirstlane_b32 s3, v1')
    r('v_and_b32 v1, 63, v0'); r('v_lshlrev_b32 v2, 4, v1')
    r('s_lshl_b32 s8, s2, 2'); r('s_add_u32 s8, s8, s3')
    r('s_lshr_b32 s9, s8, 5')
    r('s_lshr_b32 s10, s8, 3'); r('s_and_b32 s10, s10, 3')
    r('s_lshr_b32 s11, s8, 1'); r('s_and_b32 s11, s11, 3')
    r('s_and_b32 s12, s8, 1')
    r.wait(lg=0)
    r('s_add_u32 s16, s6, 0x100000'); r('s_addc_u32 s17, s7, 0'); r('s_and_b32 s17, s17, 0xffff')
    r(f's_mov_b32 s18, {psz*1024}'); r('s_mov_b32 s19, 0x20000')
    r('s_mov_b32 s20, s4'); r('s_and_b32 s21, s5, 0xffff'); r('s_mov_b32 s22, 0x200000'); r('s_mov_b32 s23, 0x20000')
    r('s_and_b32 s24, s9, 15'); r('s_lshl_b32 s24, s24, 17')
    r('s_lshr_b32 s25, s9, 4'); r('s_lshl_b32 s25, s25, 10'); r('s_add_u32 s24, s24, s25')
    r('s_lshl_b32 s25, s11, 15'); r('s_add_u32 s24, s24, s25')
    r('s_lshl_b32 s25, s10, 8'); r('s_add_u32 s24, s24, s25')
    r('v_and_b32 v3, 15, v1'); r('v_lshlrev_b32 v3, 11, v3'); r('v_lshrrev_b32 v4, 4, v1'); r('v_lshl_add_u32 v3, v4, 6, v3')
    if not part_bf16:
        r('s_lshl_b32 s13, s9, 20'); r('s_lshl_b32 s14, s10, 15'); r('s_add_u32 s13, s13, s14')
        r('s_lshl_b32 s14, s11, 10'); r('s_add_u32 s13, s13, s14')
        r('s_lshl_b32 s14, s12, 14'); r('s_add_u32 s13, s13, s14')
        for p in range(8):
            for ff in range(4):
                r(f's_add_u32 s14, s13, {p*131072 + ff*4096}')
                r(f'buffer_load_dwordx4 {vr(16 + (p*4+ff)*4)}, v2, s[16:19], s14 offen')
        for p in range(1, 8):
            for k in range(16):
                r(f'v_add_f32 v{16+k}, v{16+k}, v{16 + p*16 + k}')
        r('s_lshl_b32 s25, s12, 3'); r('s_add_u32 s24, s24, s25')
        for rr in range(4):
            r(f'v_cvt_pk_bf16_f32 v{8+2*rr}, v{16+rr}, v{20+rr}')
            r(f'v_cvt_pk_bf16_f32 v{9+2*rr}, v{24+rr}, v{28+rr}')
            r(f'buffer_store_dwordx2 v[{8+2*rr}:{9+2*rr}], v3, s[20:23], s24 offen offset:{rr*16}')
    else:
        r('s_lshl_b32 s13, s9, 19'); r('s_lshl_b32 s14, s10, 14'); r('s_add_u32 s13, s13, s14')
        r('s_lshl_b32 s14, s11, 12'); r('s_add_u32 s13, s13, s14')
        r('s_lshl_b32 s14, s12, 11'); r('s_add_u32 s13, s13, s14')
        for p in range(8):
            r(f's_add_u32 s14, s13, {p*65536}')
            for rr in range(2):
                r(f'buffer_load_dwordx4 {vr(32 + (p*2+rr)*4)}, v2, s[16:19], s14 offen offset:{rr*1024}')
        r('s_mov_b32 s26, 0xffff0000')
        for p in range(8):
            for k in range(8):
                src = 32 + p*8 + k
                if p == 0:
                    r(f'v_lshlrev_b32 v{16+2*k}, 16, v{src}')
                    r(f'v_and_b32 v{17+2*k}, s26, v{src}')
                else:
                    r(f'v_lshlrev_b32 v8, 16, v{src}')
                    r(f'v_and_b32 v9, s26, v{src}')
                    r(f'v_add_f32 v{16+2*k}, v{16+2*k}, v8')
                    r(f'v_add_f32 v{17+2*k}, v{17+2*k}, v9')
        r('s_lshl_b32 s25, s12, 5'); r('s_add_u32 s24, s24, s25')
        for rr in range(2):
            for k in range(4):
                r(f'v_cvt_pk_bf16_f32 v{8+rr*4+k}, v{16+rr*8+2*k}, v{17+rr*8+2*k}')
            r(f'buffer_store_dwordx4 {vr(8+rr*4)}, v3, s[20:23], s24 offen offset:{rr*16}')
    r.label('L_rend')
    r('s_endpgm')

    def desc(name, nv, acc):
        return '\n'.join([
            f'.amdhsa_kernel {name}',
            f'  .amdhsa_next_free_vgpr {nv}', '  .amdhsa_next_free_sgpr 102', f'  .amdhsa_accum_offset {acc}',
            '  .amdhsa_group_segment_fixed_size 0', '  .amdhsa_kernarg_size 104', '  .amdhsa_user_sgpr_count 2',
            '  .amdhsa_user_sgpr_kernarg_segment_ptr 1', '  .amdhsa_system_sgpr_workgroup_id_x 1', '.end_amdhsa_kernel'])
    tail = '.section .rodata,"a"\n.p2align 6\n' + desc(f'{NAME}_kernel', 512, 256) + '\n.p2align 6\n' + desc('reduce_kernel', 144, 144) + '\n'
    return a.text() + r.text() + tail


if __name__ == '__main__':
    import argparse
    ap = argparse.ArgumentParser()
    ap.add_argument('-o', default='k1.s')
    ap.add_argument('--kv', default='nt'); ap.add_argument('--w', default='')
    ap.add_argument('--xl', type=int, default=0); ap.add_argument('--stamps', action='store_true'); ap.add_argument('--bf16p', action='store_true')
    args = ap.parse_args()
    open(args.o, 'w').write(gen(args.kv, args.w, args.stamps, args.bf16p, args.xl))
```

```python
import sys, struct, math
sys.path.insert(0, 'work')
from asmfw import Asm

NAME = "concat_heads__gqa_block_cached__mha_block_cached__near_ridge"
HEADER = open('cdna_kernels/' + NAME + '.s.ref').read().split('; Override launch')[0]


def f32bits(x):
    return '0x%08x' % struct.unpack('<I', struct.pack('<f', x))[0]


def vr(b, n=4): return f'v[{b}:{b+n-1}]'
def ar(b, n=4): return f'a[{b}:{b+n-1}]'

V_LANE, V_K, V_V, V_WQ, V_WO, V_XR, V_XA, V_T0, V_T1, V_ST = 1, 2, 3, 4, 5, 6, 7, 8, 9, 10
V_MC = 11
V_X, V_Y = 12, 13
V_T2, V_T3 = 14, 15
F = 16
BF = 32
V_NM = 32
V_L = 36
V_M = 40
V_AL = 44
V_TMP = 48
S = 64
VS = 128
Q = 192
ACC = 0
KS = 128

sW, sB, sHG, sH, sISA = 3, 4, 5, 6, 7
sX, sWQ, sK, sV, sWO, sWS = 44, 48, 52, 56, 60, 64
sSELL, sSELH, sC = 68, 69, 70
sT0, sT1, sT2, sT3 = 71, 72, 73, 74
sKS, sKSP, sCNT, sKOFF, sVOFF, sHOFF = 75, 76, 77, 78, 79, 80
sWOB = 81

LDS_X = 0
LDS_O = 65536


def gen(kv_pol='nt', w_pol='', stamps=False, part_bf16=False, extra_launch=0):
    a = Asm()
    kvp = (' ' + kv_pol) if kv_pol else ''
    wp = (' ' + w_pol) if w_pol else ''
    a.raw(HEADER.rstrip())
    a.raw(f"; @launch kernel={NAME}_kernel grid=(256,1,1) block=(256,1,1) lds=131072")
    a.raw(f"; @launch kernel=reduce_kernel grid=(256,1,1) block=(256,1,1) lds=0")
    for _ in range(extra_launch):
        a.raw(f"; @launch kernel=reduce_kernel grid=(256,1,1) block=(256,1,1) lds=0")
    if stamps:
        a.raw("; pstamps=1024")
    a.raw('.amdgcn_target "amdgcn-amd-amdhsa--gfx950"')
    a.raw('.text')
    a.raw(f'.globl {NAME}_kernel')
    a.raw('.p2align 8')
    a.raw(f'.type {NAME}_kernel,@function')
    a.label(f'{NAME}_kernel')
    a('s_cmp_ge_u32 s2, 256')
    a('s_cbranch_scc1 L_end')
    def stamp(i):
        if stamps:
            a.wait(lg=0)
            a('s_memrealtime s[98:99]')
            a.wait(lg=0)
            a(f's_mov_b32 s{88+i}, s98')
    stamp(0)
    a('s_load_dwordx16 s[16:31], s[0:1], 0')
    a('s_load_dwordx8 s[32:39], s[0:1], 64')
    a('s_load_dwordx2 s[40:41], s[0:1], 96')
    a('v_lshrrev_b32 v1, 6, v0')
    a(f'v_readfirstlane_b32 s{sW}, v1')
    a(f'v_and_b32 v{V_LANE}, 63, v0')
    a(f's_lshr_b32 s{sT0}, s2, 3')
    a(f's_lshr_b32 s{sISA}, s{sT0}, 4')
    a(f's_and_b32 s{sB}, s{sT0}, 7')
    a(f's_and_b32 s{sT1}, s2, 1'); a(f's_lshl_b32 s{sT1}, s{sT1}, 3'); a(f's_add_u32 s{sB}, s{sB}, s{sT1}')
    a(f's_and_b32 s{sHG}, s2, 6')
    a(f's_lshr_b32 s{sT1}, s{sT0}, 3'); a(f's_and_b32 s{sT1}, s{sT1}, 1'); a(f's_add_u32 s{sHG}, s{sHG}, s{sT1}')
    a(f's_lshl_b32 s{sT1}, s{sISA}, 1'); a(f's_add_u32 s{sHG}, s{sHG}, s{sT1}'); a(f's_and_b32 s{sHG}, s{sHG}, 7')
    a(f's_lshl_b32 s{sH}, s{sHG}, 2')
    a(f's_add_u32 s{sH}, s{sH}, s{sW}')
    a(f's_mov_b32 s{sSELL}, 0x05040100')
    a(f's_mov_b32 s{sSELH}, 0x07060302')
    cval = (128 ** -0.5) * math.log2(math.e)
    a(f's_mov_b32 s{sC}, {f32bits(cval)}')
    a(f'v_and_b32 v{V_T0}, 15, v{V_LANE}')
    a(f'v_lshrrev_b32 v{V_T1}, 4, v{V_LANE}')
    a(f'v_lshlrev_b32 v{V_K}, 8, v{V_T0}')
    a(f'v_lshl_add_u32 v{V_K}, v{V_T1}, 4, v{V_K}')
    a(f'v_lshlrev_b32 v{V_V}, 10, v{V_T1}')
    a(f'v_lshl_add_u32 v{V_V}, v{V_T0}, 4, v{V_V}')
    a(f'v_and_b32 v{V_T2}, 3, v{V_T0}')
    a(f'v_lshlrev_b32 v{V_T2}, 2, v{V_T2}')
    a(f'v_lshrrev_b32 v{V_T3}, 2, v{V_T0}')
    a(f'v_add_u32 v{V_T2}, v{V_T2}, v{V_T3}')
    a(f'v_lshlrev_b32 v{V_WQ}, 16, v{V_T1}')
    a(f'v_lshl_add_u32 v{V_WQ}, v{V_T2}, 4, v{V_WQ}')
    a(f'v_lshlrev_b32 v{V_WO}, 15, v{V_T1}')
    a(f'v_lshl_add_u32 v{V_WO}, v{V_T0}, 4, v{V_WO}')
    a(f'v_lshlrev_b32 v{V_XA}, 10, v{V_T0}')
    a(f'v_lshl_add_u32 v{V_XA}, v{V_T1}, 4, v{V_XA}')
    a(f'v_lshlrev_b32 v{V_ST}, 4, v{V_LANE}')
    a.wait(lg=0)
    a(f's_cmp_eq_u32 s{sISA}, 1')
    def sel(dst, pa, pb):
        a(f's_cselect_b32 s{dst}, s{pa}, s{pb}')
        a(f's_cselect_b32 s{dst+1}, s{pa+1}, s{pb+1}')
    sel(sX, 16, 26); sel(sK, 18, 28); sel(sV, 20, 30); sel(sWQ, 22, 32); sel(sWO, 24, 34)
    a(f's_lshl_b32 s{sT0}, s{sB}, 3'); a(f's_add_u32 s{sT0}, s{sT0}, s{sHG}')
    a(f's_lshl_b32 s{sT1}, s{sB}, 5'); a(f's_add_u32 s{sT1}, s{sT1}, s{sH}')
    a(f's_cmp_eq_u32 s{sISA}, 1')
    a(f's_cselect_b32 s{sT0}, s{sT0}, s{sT1}')
    a(f's_lshl_b32 s{sT0}, s{sT0}, 17')
    for sr in (sK, sV):
        a(f's_add_u32 s{sr}, s{sr}, s{sT0}'); a(f's_addc_u32 s{sr+1}, s{sr+1}, 0')
    a(f's_lshl_b32 s{sT0}, s{sB}, 16')
    a(f's_add_u32 s{sX}, s{sX}, s{sT0}'); a(f's_addc_u32 s{sX+1}, s{sX+1}, 0')
    for sr, size in ((sX, 65536), (sWQ, 4 << 20), (sK, 131072), (sV, 131072), (sWO, 4 << 20)):
        a(f's_and_b32 s{sr+1}, s{sr+1}, 0xffff')
        a(f's_mov_b32 s{sr+2}, {size}')
        a(f's_mov_b32 s{sr+3}, 0x20000')
    psz = 16384 if part_bf16 else 32768
    a(f's_xor_b32 s{sT0}, s{sISA}, 1'); a(f's_lshl_b32 s{sT0}, s{sT0}, 4'); a(f's_add_u32 s{sT0}, s{sT0}, s{sB}')
    a(f's_lshl_b32 s{sT0}, s{sT0}, 3'); a(f's_add_u32 s{sT0}, s{sT0}, s{sHG}')
    a(f's_lshl_b32 s{sT0}, s{sT0}, 2'); a(f's_add_u32 s{sT0}, s{sT0}, s{sW}')
    a(f's_mul_i32 s{sT0}, s{sT0}, {psz}')
    a(f's_add_u32 s{sT0}, s{sT0}, 0x100000')
    a(f's_add_u32 s{sWS}, s40, s{sT0}'); a(f's_addc_u32 s{sWS+1}, s41, 0')
    a(f's_and_b32 s{sWS+1}, s{sWS+1}, 0xffff'); a(f's_mov_b32 s{sWS+2}, {psz}'); a(f's_mov_b32 s{sWS+3}, 0x20000')
    a(f's_lshl_b32 s{sHOFF}, s{sH}, 8')
    a(f's_lshl_b32 s{sWOB}, s{sHG}, 19'); a(f's_lshl_b32 s{sT0}, s{sW}, 8'); a(f's_add_u32 s{sWOB}, s{sWOB}, s{sT0}')

    a(f's_lshl_b32 s{sT0}, s{sW}, 14')
    a(f's_lshl_b32 s{sT1}, s{sW}, 10')
    for ks in range(16):
        a(f's_add_u32 m0, s{sT1}, {LDS_X + ks*4096}')
        a(f'buffer_load_dwordx4 v{V_XA}, s[{sX}:{sX+3}], s{sT0} offen{wp} lds')
        a(f's_add_u32 s{sT0}, s{sT0}, 64')

    WB = [S, S + 32, VS, VS + 32]

    def wq_block_loads(slot, sks):
        L = []
        def first():
            a(f's_lshl_b32 s{sT2}, s{sks}, 18')
            a(f's_add_u32 s{sT2}, s{sT2}, s{sHOFF}')
            a(f'buffer_load_dwordx4 {vr(WB[slot])}, v{V_WQ}, s[{sWQ}:{sWQ+3}], s{sT2} offen{wp}')
        L.append(first)
        for i in range(1, 8):
            def nxt(i=i):
                a(f's_add_u32 s{sT2}, s{sT2}, 8192')
                a(f'buffer_load_dwordx4 {vr(WB[slot] + 4*i)}, v{V_WQ}, s[{sWQ}:{sWQ+3}], s{sT2} offen{wp}')
            L.append(nxt)
        return L

    def wo_block_loads(base, sks):
        L = []
        for i in range(8):
            def ld(i=i):
                if i == 0:
                    a(f's_lshr_b32 s{sT2}, s{sks}, 2'); a(f's_lshl_b32 s{sT2}, s{sT2}, 17')
                    a(f's_and_b32 s{sT3}, s{sks}, 3'); a(f's_lshl_b32 s{sT3}, s{sT3}, 13')
                    a(f's_add_u32 s{sT2}, s{sT2}, s{sT3}'); a(f's_add_u32 s{sT2}, s{sT2}, s{sWOB}')
                if i == 4:
                    a(f's_add_u32 s{sT2}, s{sT2}, 4096')
                a(f'buffer_load_dwordx4 {vr(base + 4*i)}, v{V_WO}, s[{sWO}:{sWO+3}], s{sT2} offen offset:{(i&3)*1024}{wp}')
            L.append(ld)
        return L

    def k_load(kt, s):
        def ld():
            if s == 0:
                a(f's_add_u32 s{sT0}, s{sKOFF}, {kt*4096}')
            a(f'buffer_load_dwordx4 {ar(KS + (kt*4+s)*4)}, v{V_K}, s[{sK}:{sK+3}], s{sT0} offen offset:{64*s}{kvp}')
        return ld

    def v_load(g, i):
        def ld():
            if i % 4 == 0:
                a(f's_add_u32 s{sT1}, s{sVOFF}, {g*8192 + (i//4)*4096}')
            a(f'buffer_load_dwordx4 {vr(VS + (g*8+i)*4)}, v{V_V}, s[{sV}:{sV+3}], s{sT1} offen offset:{(i%4)*256}{kvp}')
        return ld

    def perms(blk, fp, fset):
        L = []
        for half, sel_ in ((0, sSELL), (1, sSELH)):
            for p in range(4):
                def pm(half=half, sel_=sel_, p=p):
                    a(f'v_perm_b32 v{F + fset*8 + half*4 + p}, v{blk + (2*p+1)*4 + fp}, v{blk + (2*p)*4 + fp}, s{sel_}')
                L.append(pm)
        return L

    def gemm_block(blk, bfr, post=(), fill=()):
        post = list(post); fill = list(fill)
        for pm in perms(blk, 0, 0):
            pm()
        for fp in range(4):
            nxt = perms(blk, fp + 1, (fp + 1) & 1) if fp < 3 else post
            nxt = list(nxt)
            for half in range(2):
                f = 2*fp + half
                for qt in range(4):
                    acc = ACC + (f*4 + qt)*4
                    a(f'v_mfma_f32_16x16x32_bf16 {ar(acc)}, {vr(F + (fp&1)*8 + half*4)}, {vr(bfr[qt])}, {ar(acc)}')
                    if nxt:
                        nxt.pop(0)()
                    if fill:
                        fill.pop(0)()
            for c in nxt:
                c()
        for c in fill:
            c()

    def bfrag_reads(buf, lds_base, sks):
        L = []
        def adr():
            a(f's_lshl_b32 s{sT3}, s{sks}, 12')
            a(f'v_add_u32 v{V_XR}, s{sT3}, v{V_ST}')
        L.append(adr)
        for qt in range(4):
            def rd(qt=qt):
                a(f'ds_read_b128 {vr(BF + buf*16 + qt*4)}, v{V_XR} offset:{lds_base + qt*1024}')
            L.append(rd)
        return L

    def inc_ks(s):
        a(f's_add_u32 s{s}, s{s}, 1'); a(f's_and_b32 s{s}, s{s}, 15')

    def proj_phase(tag, lds_base, block_loads, last_fill):
        assert lds_base < 65536 or True
        def step(u, last):
            fill = []
            if not (last and u == 3):
                inc_ks(sKS)
                fill = bfrag_reads((u + 1) & 1, lds_base, sKS)
            if not last:
                post = block_loads(u, sKSP) + [lambda: inc_ks(sKSP)]
            else:
                post = last_fill(u)
            extra = extra_fill(u, last)
            gemm_block(WB[u], [BF + (u & 1)*16 + qt*4 for qt in range(4)], post=post, fill=fill + extra)
        a(f's_mov_b32 s{sCNT}, 3')
        a.flush_hazards()
        st0 = a.state()
        a.label(f'L_{tag}')
        for u in range(4):
            step(u, False)
        a(f's_sub_u32 s{sCNT}, s{sCNT}, 1')
        a(f's_cmp_lg_u32 s{sCNT}, 0')
        a.flush_hazards()
        st1 = a.state()
        a(f's_cbranch_scc1 L_{tag}')
        check_states(st0, st1, tag)
        for u in range(4):
            step(u, True)

    def check_states(st0, st1, tag):
        n = min(len(st0[0]), len(st1[0]))
        assert len(st0[0]) >= len(st1[0]) and st0[0][len(st0[0]) - n:] == st1[0][len(st1[0]) - n:], (tag, 'vm', len(st0[0]), len(st1[0]))
        n = min(len(st0[1]), len(st1[1]))
        assert len(st0[1]) == len(st1[1]) and st0[1] == st1[1], (tag, 'lg', st0[1], st1[1])

    a(f's_mov_b32 s{sKS}, s{sB}')
    a(f's_mov_b32 s{sKSP}, s{sB}')
    a(f's_mov_b32 s{sKOFF}, 0')
    a(f's_mov_b32 s{sVOFF}, 0')
    for u in range(4):
        for c in wq_block_loads(u, sKSP):
            c()
        inc_ks(sKSP)
    for i in range(128):
        a(f'v_accvgpr_write_b32 a{ACC+i}, 0')
    a.wait(vm=32)
    a('s_barrier')
    for c in bfrag_reads(0, LDS_X, sKS):
        c()
    extra_fill = lambda u, last: []
    def p1_last(u):
        L = []
        if u == 0:
            L += [k_load(kt, s) for kt in range(2) for s in range(4)]
        if u == 1:
            L += [k_load(kt, s) for kt in range(2, 4) for s in range(4)]
        if u == 2:
            L += [v_load(0, i) for i in range(8)]
        if u == 3:
            L += [v_load(1, i) for i in range(8)]
        return L
    proj_phase('p1', LDS_X, lambda u, sks: wq_block_loads(u, sks), p1_last)
    stamp(1)
    for qt in range(4):
        for r in range(4):
            for fp in range(4):
                t0 = V_TMP + (fp*2) % 16; t1 = t0 + 1
                a(f'v_accvgpr_read_b32 v{t0}, a{ACC + ((2*fp)*4 + qt)*4 + r}')
                a(f'v_accvgpr_read_b32 v{t1}, a{ACC + ((2*fp+1)*4 + qt)*4 + r}')
                a(f'v_cvt_pk_bf16_f32 v{Q + (qt*4 + r)*4 + fp}, v{t0}, v{t1}')
    for i in range(128):
        a(f'v_accvgpr_write_b32 a{ACC+i}, 0')
    a(f'v_mov_b32 v{V_MC}, {f32bits(-3.0e38)}')
    for qt in range(4):
        a(f'v_mov_b32 v{V_L+qt}, 0')
        a(f'v_mov_b32 v{V_NM+qt}, 0')


    def chunk(last, idx):
        if not last:
            a(f's_add_u32 s{sKOFF}, s{sKOFF}, 16384')
        for kt in range(4):
            for s in range(4):
                for qt in range(4):
                    sreg = S + (kt*4 + qt)*4
                    c = '0' if s == 0 else vr(sreg)
                    a(f'v_mfma_f32_16x16x32_bf16 {vr(sreg)}, {ar(KS + (kt*4+s)*4)}, {vr(Q + (qt*4+s)*4)}, {c}')
                if not last:
                    k_load(kt, s)()
        for qt in range(4):
            vals = [S + (kt*4 + qt)*4 + r for kt in range(4) for r in range(4)]
            a(f'v_max3_f32 v{V_M+qt}, v{vals[0]}, v{vals[1]}, v{vals[2]}')
            for i in range(3, 15, 2):
                a(f'v_max3_f32 v{V_M+qt}, v{V_M+qt}, v{vals[i]}, v{vals[i+1]}')
            a(f'v_max_f32 v{V_M+qt}, v{V_M+qt}, v{vals[15]}')
        a(f'v_permlane32_swap_b32 v{V_M}, v{V_M+1}')
        a(f'v_permlane32_swap_b32 v{V_M+2}, v{V_M+3}')
        a(f'v_max_f32 v{V_X}, v{V_M}, v{V_M+1}')
        a(f'v_max_f32 v{V_Y}, v{V_M+2}, v{V_M+3}')
        a(f'v_permlane16_swap_b32 v{V_X}, v{V_Y}')
        a(f'v_max_f32 v{V_X}, v{V_X}, v{V_Y}')
        a(f'v_mul_f32 v{V_X}, s{sC}, v{V_X}')
        a(f'v_sub_f32 v{V_Y}, v{V_X}, v{V_MC}')
        a(f'v_cmp_lt_f32 vcc, {f32bits(8.0)}, v{V_Y}')
        a.nop(1)
        a(f's_cbranch_vccz L_fast{idx}')
        st = a.state()
        a(f'v_max_f32 v{V_X}, v{V_X}, v{V_MC}')
        a(f'v_sub_f32 v{V_Y}, v{V_MC}, v{V_X}')
        a(f'v_exp_f32 v{V_Y}, v{V_Y}')
        a(f'v_mov_b32 v{V_MC}, v{V_X}')
        a(f'v_sub_f32 v{V_X}, 0, v{V_X}')
        def expand(src, dst):
            a(f'v_mov_b32 v{dst+0}, v{src}')
            a(f'v_mov_b32 v{dst+2}, v{src}')
            a(f'v_permlane16_swap_b32 v{dst+0}, v{dst+2}')
            a(f'v_mov_b32 v{dst+1}, v{dst+0}')
            a(f'v_mov_b32 v{dst+3}, v{dst+2}')
            a(f'v_permlane32_swap_b32 v{dst+0}, v{dst+1}')
            a(f'v_permlane32_swap_b32 v{dst+2}, v{dst+3}')
        expand(V_X, V_NM)
        expand(V_Y, V_AL)
        for qt in range(4):
            a(f'v_mul_f32 v{V_L+qt}, v{V_L+qt}, v{V_AL+qt}')
        for f in range(8):
            for qt in range(4):
                for r in range(4):
                    t = V_TMP + (qt*4 + r)
                    a(f'v_accvgpr_read_b32 v{t}, a{ACC + (f*4+qt)*4 + r}')
            for qt in range(4):
                for r in range(4):
                    t = V_TMP + (qt*4 + r)
                    a(f'v_mul_f32 v{t}, v{t}, v{V_AL+qt}')
            for qt in range(4):
                for r in range(4):
                    t = V_TMP + (qt*4 + r)
                    a(f'v_accvgpr_write_b32 a{ACC + (f*4+qt)*4 + r}, v{t}')
        a.flush_hazards()
        assert a.state() == st
        a.label(f'L_fast{idx}')
        for g in range(2):
            for qt in range(4):
                for kt in (2*g, 2*g + 1):
                    b = S + (kt*4 + qt)*4
                    for r in range(4):
                        a(f'v_fma_f32 v{b+r}, v{b+r}, s{sC}, v{V_NM+qt}')
                    for r in range(4):
                        a(f'v_exp_f32 v{b+r}, v{b+r}')
                    for r in range(4):
                        a(f'v_add_f32 v{V_L+qt}, v{V_L+qt}, v{b+r}')
                    d = S + ((2*g)*4 + qt)*4 + (kt & 1)*2
                    a(f'v_cvt_pk_bf16_f32 v{d}, v{b}, v{b+1}')
                    a(f'v_cvt_pk_bf16_f32 v{d+1}, v{b+2}, v{b+3}')
        if not last:
            a(f's_add_u32 s{sVOFF}, s{sVOFF}, 16384')
        for g in range(2):
            if not last:
                post = [v_load(g, i) for i in range(8)]
            else:
                post = wo_block_loads(WB[2 + g], sKSP) + [lambda: inc_ks(sKSP)]
            gemm_block(VS + g*32, [S + ((2*g)*4 + qt)*4 for qt in range(4)], post=post)

    stamp(2)
    a(f's_mov_b32 s{sCNT}, 7')
    a.flush_hazards()
    st0 = a.state()
    a.label('L_p2')
    chunk(False, 0)
    a(f's_sub_u32 s{sCNT}, s{sCNT}, 1')
    a(f's_cmp_lg_u32 s{sCNT}, 0')
    a.flush_hazards()
    st1 = a.state()
    a('s_cbranch_scc1 L_p2')
    check_states(st0, st1, 'p2')
    a(f's_add_u32 s{sKSP}, s{sB}, 2'); a(f's_and_b32 s{sKSP}, s{sKSP}, 15')
    chunk(True, 1)
    a(f's_mov_b32 s{sKS}, s{sB}')
    for c in wo_block_loads(WB[0], sKS): c()
    inc_ks(sKS)
    for c in wo_block_loads(WB[1], sKS): c()
    a(f's_mov_b32 s{sKS}, s{sB}')

    stamp(3)
    for qt in range(4):
        a(f'v_mov_b32 v{V_M+qt}, v{V_L+qt}')
    for qt in range(4):
        a(f'v_permlane32_swap_b32 v{V_L+qt}, v{V_M+qt}')
    for qt in range(4):
        a(f'v_add_f32 v{V_L+qt}, v{V_L+qt}, v{V_M+qt}')
    for qt in range(4):
        a(f'v_mov_b32 v{V_M+qt}, v{V_L+qt}')
    for qt in range(4):
        a(f'v_permlane16_swap_b32 v{V_L+qt}, v{V_M+qt}')
    for qt in range(4):
        a(f'v_add_f32 v{V_L+qt}, v{V_L+qt}, v{V_M+qt}')
    for qt in range(4):
        a(f'v_rcp_f32 v{V_AL+qt}, v{V_L+qt}')
    a(f's_lshl_b32 s{sT0}, s{sW}, 14')
    a(f's_add_u32 s{sT0}, s{sT0}, {LDS_O}')
    a(f'v_add_u32 v{V_XR}, s{sT0}, v{V_ST}')
    for qt in range(4):
        for r in range(4):
            for f in range(8):
                a(f'v_accvgpr_read_b32 v{V_TMP+f}, a{ACC + (f*4 + qt)*4 + r}')
            for f in range(8):
                a(f'v_mul_f32 v{V_TMP+f}, v{V_TMP+f}, v{V_AL+qt}')
            d = Q + (qt*4 + r)*4
            for fp in range(4):
                a(f'v_cvt_pk_bf16_f32 v{d+fp}, v{V_TMP+2*fp}, v{V_TMP+2*fp+1}')
            a(f'ds_write_b128 v{V_XR}, {vr(d)} offset:{(r*4+qt)*1024}')
    for i in range(128):
        a(f'v_accvgpr_write_b32 a{ACC+i}, 0')
    a.wait(lg=0)
    a('s_barrier')

    stamp(4)
    a(f'v_add_u32 v{V_ST}, {LDS_O}, v{V_ST}')
    for c in bfrag_reads(0, 0, sKS):
        c()
    a.wait(vm=0)
    a(f's_add_u32 s{sKSP}, s{sB}, 4'); a(f's_and_b32 s{sKSP}, s{sKSP}, 15')
    a.vm = [set(('v', WB[u] + 4*i + k) for k in range(4)) for u in range(4) for i in range(8)]
    proj_phase('p3', 0, lambda u, sks: wo_block_loads(WB[u], sks), lambda u: [])
    a(f'v_subrev_u32 v{V_ST}, {LDS_O}, v{V_ST}')
    stamp(5)
    if not part_bf16:
        for t in range(32):
            if t % 4 == 0:
                a(f's_mov_b32 s{sT0}, {t*1024}')
            a(f'buffer_store_dwordx4 {ar(ACC + t*4)}, v{V_ST}, s[{sWS}:{sWS+3}], s{sT0} offen offset:{(t%4)*1024}')
    else:
        for qt in range(4):
            a(f's_mov_b32 s{sT0}, {qt*4096}')
            for r in range(4):
                d = Q + (qt*4 + r)*4
                for f in range(8):
                    a(f'v_accvgpr_read_b32 v{V_TMP+f}, a{ACC + (f*4 + qt)*4 + r}')
                for fp in range(4):
                    a(f'v_cvt_pk_bf16_f32 v{d+fp}, v{V_TMP+2*fp}, v{V_TMP+2*fp+1}')
                a(f'buffer_store_dwordx4 {vr(d)}, v{V_ST}, s[{sWS}:{sWS+3}], s{sT0} offen offset:{r*1024}')
    if stamps:
        a.wait(vm=0)
        stamp(6)
        a('s_mov_b32 s84, s40'); a('s_and_b32 s85, s41, 0xffff'); a('s_mov_b32 s86, 0x100000'); a('s_mov_b32 s87, 0x20000')
        a(f's_lshl_b32 s{sT0}, s2, 2'); a(f's_add_u32 s{sT0}, s{sT0}, s{sW}'); a(f's_lshl_b32 s{sT0}, s{sT0}, 5')
        for i in range(8):
            a(f'v_mov_b32 v{16+i}, s{88+min(i,6)}')
        a('v_mov_b32 v28, 0')
        a('s_mov_b64 exec, 1')
        a(f'buffer_store_dwordx4 v[16:19], v28, s[84:87], s{sT0} offen')
        a(f'buffer_store_dwordx4 v[20:23], v28, s[84:87], s{sT0} offen offset:16')
        a('s_mov_b32 s84, s38'); a('s_and_b32 s85, s39, 0xffff'); a('s_mov_b32 s86, 256'); a('s_mov_b32 s87, 0x20000')
        a('v_not_b32 v29, v16')
        a(f's_lshl_b32 s{sT0}, s{sISA}, 5')
        a(f'buffer_atomic_umax v29, v28, s[84:87], s{sT0} offen offset:28')
        for i in range(7):
            a(f'buffer_atomic_umax v{16+i}, v28, s[84:87], s{sT0} offen offset:{4*i}')
    a.label('L_end')
    a('s_endpgm')

    r = Asm()
    r.raw('.globl reduce_kernel'); r.raw('.p2align 8'); r.raw('.type reduce_kernel,@function')
    r.label('reduce_kernel')
    r('s_cmp_ge_u32 s2, 256'); r('s_cbranch_scc1 L_rend')
    r('s_load_dwordx2 s[4:5], s[0:1], 80')
    r('s_load_dwordx2 s[6:7], s[0:1], 96')
    r('v_lshrrev_b32 v1, 6, v0'); r('v_readfirstlane_b32 s3, v1')
    r('v_and_b32 v1, 63, v0'); r('v_lshlrev_b32 v2, 4, v1')
    r('s_lshl_b32 s8, s2, 2'); r('s_add_u32 s8, s8, s3')
    r('s_lshr_b32 s9, s8, 5')
    r('s_lshr_b32 s10, s8, 3'); r('s_and_b32 s10, s10, 3')
    r('s_lshr_b32 s11, s8, 1'); r('s_and_b32 s11, s11, 3')
    r('s_and_b32 s12, s8, 1')
    r.wait(lg=0)
    r('s_add_u32 s16, s6, 0x100000'); r('s_addc_u32 s17, s7, 0'); r('s_and_b32 s17, s17, 0xffff')
    r(f's_mov_b32 s18, {psz*1024}'); r('s_mov_b32 s19, 0x20000')
    r('s_mov_b32 s20, s4'); r('s_and_b32 s21, s5, 0xffff'); r('s_mov_b32 s22, 0x200000'); r('s_mov_b32 s23, 0x20000')
    r('s_and_b32 s24, s9, 15'); r('s_lshl_b32 s24, s24, 17')
    r('s_lshr_b32 s25, s9, 4'); r('s_lshl_b32 s25, s25, 10'); r('s_add_u32 s24, s24, s25')
    r('s_lshl_b32 s25, s11, 15'); r('s_add_u32 s24, s24, s25')
    r('s_lshl_b32 s25, s10, 8'); r('s_add_u32 s24, s24, s25')
    r('v_and_b32 v3, 15, v1'); r('v_lshlrev_b32 v3, 11, v3'); r('v_lshrrev_b32 v4, 4, v1'); r('v_lshl_add_u32 v3, v4, 6, v3')
    if not part_bf16:
        r('s_lshl_b32 s13, s9, 20'); r('s_lshl_b32 s14, s10, 15'); r('s_add_u32 s13, s13, s14')
        r('s_lshl_b32 s14, s11, 10'); r('s_add_u32 s13, s13, s14')
        r('s_lshl_b32 s14, s12, 14'); r('s_add_u32 s13, s13, s14')
        for p in range(8):
            for ff in range(4):
                r(f's_add_u32 s14, s13, {p*131072 + ff*4096}')
                r(f'buffer_load_dwordx4 {vr(16 + (p*4+ff)*4)}, v2, s[16:19], s14 offen')
        for p in range(1, 8):
            for k in range(16):
                r(f'v_add_f32 v{16+k}, v{16+k}, v{16 + p*16 + k}')
        r('s_lshl_b32 s25, s12, 3'); r('s_add_u32 s24, s24, s25')
        for rr in range(4):
            r(f'v_cvt_pk_bf16_f32 v{8+2*rr}, v{16+rr}, v{20+rr}')
            r(f'v_cvt_pk_bf16_f32 v{9+2*rr}, v{24+rr}, v{28+rr}')
            r(f'buffer_store_dwordx2 v[{8+2*rr}:{9+2*rr}], v3, s[20:23], s24 offen offset:{rr*16}')
    else:
        r('s_lshl_b32 s13, s9, 19'); r('s_lshl_b32 s14, s10, 14'); r('s_add_u32 s13, s13, s14')
        r('s_lshl_b32 s14, s11, 12'); r('s_add_u32 s13, s13, s14')
        r('s_lshl_b32 s14, s12, 11'); r('s_add_u32 s13, s13, s14')
        for p in range(8):
            r(f's_add_u32 s14, s13, {p*65536}')
            for rr in range(2):
                r(f'buffer_load_dwordx4 {vr(32 + (p*2+rr)*4)}, v2, s[16:19], s14 offen offset:{rr*1024}')
        r('s_mov_b32 s26, 0xffff0000')
        for p in range(8):
            for k in range(8):
                src = 32 + p*8 + k
                if p == 0:
                    r(f'v_lshlrev_b32 v{16+2*k}, 16, v{src}')
                    r(f'v_and_b32 v{17+2*k}, s26, v{src}')
                else:
                    r(f'v_lshlrev_b32 v8, 16, v{src}')
                    r(f'v_and_b32 v9, s26, v{src}')
                    r(f'v_add_f32 v{16+2*k}, v{16+2*k}, v8')
                    r(f'v_add_f32 v{17+2*k}, v{17+2*k}, v9')
        r('s_lshl_b32 s25, s12, 5'); r('s_add_u32 s24, s24, s25')
        for rr in range(2):
            for k in range(4):
                r(f'v_cvt_pk_bf16_f32 v{8+rr*4+k}, v{16+rr*8+2*k}, v{17+rr*8+2*k}')
            r(f'buffer_store_dwordx4 {vr(8+rr*4)}, v3, s[20:23], s24 offen offset:{rr*16}')
    r.label('L_rend')
    r('s_endpgm')

    def desc(name, nv, acc):
        return '\n'.join([
            f'.amdhsa_kernel {name}',
            f'  .amdhsa_next_free_vgpr {nv}', '  .amdhsa_next_free_sgpr 102', f'  .amdhsa_accum_offset {acc}',
            '  .amdhsa_group_segment_fixed_size 0', '  .amdhsa_kernarg_size 104', '  .amdhsa_user_sgpr_count 2',
            '  .amdhsa_user_sgpr_kernarg_segment_ptr 1', '  .amdhsa_system_sgpr_workgroup_id_x 1', '.end_amdhsa_kernel'])
    tail = '.section .rodata,"a"\n.p2align 6\n' + desc(f'{NAME}_kernel', 512, 256) + '\n.p2align 6\n' + desc('reduce_kernel', 144, 144) + '\n'
    return a.text() + r.text() + tail


if __name__ == '__main__':
    import argparse
    ap = argparse.ArgumentParser()
    ap.add_argument('-o', default='k1.s')
    ap.add_argument('--kv', default='nt'); ap.add_argument('--w', default='')
    ap.add_argument('--xl', type=int, default=0); ap.add_argument('--stamps', action='store_true'); ap.add_argument('--bf16p', action='store_true')
    args = ap.parse_args()
    open(args.o, 'w').write(gen(args.kv, args.w, args.stamps, args.bf16p, args.xl))
```

```python
import sys, struct, math
sys.path.insert(0, 'work')
from asmfw import Asm

NAME = "concat_heads__gqa_block_cached__mha_block_cached__near_ridge"
HEADER = open('cdna_kernels/' + NAME + '.s.ref').read().split('; Override launch')[0]


def f32bits(x):
    return '0x%08x' % struct.unpack('<I', struct.pack('<f', x))[0]


def vr(b, n=4): return f'v[{b}:{b+n-1}]'
def ar(b, n=4): return f'a[{b}:{b+n-1}]'

V_LANE, V_K, V_V, V_WQ, V_WO, V_XR, V_XA, V_T0, V_T1, V_ST = 1, 2, 3, 4, 5, 6, 7, 8, 9, 10
V_MC = 11
V_X, V_Y = 12, 13
V_T2, V_T3 = 14, 15
F = 16
BF = 32
V_NM = 32
V_L = 36
V_M = 40
V_AL = 44
V_TMP = 48
S = 64
VS = 128
Q = 192
ACC = 0
KS = 128

sW, sB, sHG, sH, sISA = 3, 4, 5, 6, 7
sX, sWQ, sK, sV, sWO, sWS = 44, 48, 52, 56, 60, 64
sSELL, sSELH, sC = 68, 69, 70
sT0, sT1, sT2, sT3 = 71, 72, 73, 74
sKS, sKSP, sCNT, sKOFF, sVOFF, sHOFF = 75, 76, 77, 78, 79, 80
sWOB = 81

LDS_X = 0
LDS_O = 65536


def gen(kv_pol='nt', w_pol='', stamps=False, part_bf16=False, extra_launch=0):
    a = Asm()
    kvp = (' ' + kv_pol) if kv_pol else ''
    wp = (' ' + w_pol) if w_pol else ''
    a.raw(HEADER.rstrip())
    a.raw(f"; @launch kernel={NAME}_kernel grid=(256,1,1) block=(256,1,1) lds=131072")
    a.raw(f"; @launch kernel=reduce_kernel grid=(256,1,1) block=(256,1,1) lds=0")
    for _ in range(extra_launch):
        a.raw(f"; @launch kernel=reduce_kernel grid=(256,1,1) block=(256,1,1) lds=0")
    if stamps:
        a.raw("; pstamps=1024")
    a.raw('.amdgcn_target "amdgcn-amd-amdhsa--gfx950"')
    a.raw('.text')
    a.raw(f'.globl {NAME}_kernel')
    a.raw('.p2align 8')
    a.raw(f'.type {NAME}_kernel,@function')
    a.label(f'{NAME}_kernel')
    a('s_cmp_ge_u32 s2, 256')
    a('s_cbranch_scc1 L_end')
    def stamp(i):
        if stamps:
            a.wait(lg=0)
            a('s_memrealtime s[98:99]')
            a.wait(lg=0)
            a(f's_mov_b32 s{88+i}, s98')
    stamp(0)
    a('s_load_dwordx16 s[16:31], s[0:1], 0')
    a('s_load_dwordx8 s[32:39], s[0:1], 64')
    a('s_load_dwordx2 s[40:41], s[0:1], 96')
    a('v_lshrrev_b32 v1, 6, v0')
    a(f'v_readfirstlane_b32 s{sW}, v1')
    a(f'v_and_b32 v{V_LANE}, 63, v0')
    a(f's_lshr_b32 s{sT0}, s2, 3')
    a(f's_lshr_b32 s{sISA}, s{sT0}, 4')
    a(f's_and_b32 s{sB}, s{sT0}, 7')
    a(f's_and_b32 s{sT1}, s2, 1'); a(f's_lshl_b32 s{sT1}, s{sT1}, 3'); a(f's_add_u32 s{sB}, s{sB}, s{sT1}')
    a(f's_and_b32 s{sHG}, s2, 6')
    a(f's_lshr_b32 s{sT1}, s{sT0}, 3'); a(f's_and_b32 s{sT1}, s{sT1}, 1'); a(f's_add_u32 s{sHG}, s{sHG}, s{sT1}')
    a(f's_lshl_b32 s{sT1}, s{sISA}, 1'); a(f's_add_u32 s{sHG}, s{sHG}, s{sT1}'); a(f's_and_b32 s{sHG}, s{sHG}, 7')
    a(f's_lshl_b32 s{sH}, s{sHG}, 2')
    a(f's_add_u32 s{sH}, s{sH}, s{sW}')
    a(f's_mov_b32 s{sSELL}, 0x05040100')
    a(f's_mov_b32 s{sSELH}, 0x07060302')
    cval = (128 ** -0.5) * math.log2(math.e)
    a(f's_mov_b32 s{sC}, {f32bits(cval)}')
    a(f'v_and_b32 v{V_T0}, 15, v{V_LANE}')
    a(f'v_lshrrev_b32 v{V_T1}, 4, v{V_LANE}')
    a(f'v_lshlrev_b32 v{V_K}, 8, v{V_T0}')
    a(f'v_lshl_add_u32 v{V_K}, v{V_T1}, 4, v{V_K}')
    a(f'v_lshlrev_b32 v{V_V}, 10, v{V_T1}')
    a(f'v_lshl_add_u32 v{V_V}, v{V_T0}, 4, v{V_V}')
    a(f'v_and_b32 v{V_T2}, 3, v{V_T0}')
    a(f'v_lshlrev_b32 v{V_T2}, 2, v{V_T2}')
    a(f'v_lshrrev_b32 v{V_T3}, 2, v{V_T0}')
    a(f'v_add_u32 v{V_T2}, v{V_T2}, v{V_T3}')
    a(f'v_lshlrev_b32 v{V_WQ}, 16, v{V_T1}')
    a(f'v_lshl_add_u32 v{V_WQ}, v{V_T2}, 4, v{V_WQ}')
    a(f'v_lshlrev_b32 v{V_WO}, 15, v{V_T1}')
    a(f'v_lshl_add_u32 v{V_WO}, v{V_T0}, 4, v{V_WO}')
    a(f'v_lshlrev_b32 v{V_XA}, 10, v{V_T0}')
    a(f'v_lshl_add_u32 v{V_XA}, v{V_T1}, 4, v{V_XA}')
    a(f'v_lshlrev_b32 v{V_ST}, 4, v{V_LANE}')
    a.wait(lg=0)
    a(f's_cmp_eq_u32 s{sISA}, 1')
    def sel(dst, pa, pb):
        a(f's_cselect_b32 s{dst}, s{pa}, s{pb}')
        a(f's_cselect_b32 s{dst+1}, s{pa+1}, s{pb+1}')
    sel(sX, 16, 26); sel(sK, 18, 28); sel(sV, 20, 30); sel(sWQ, 22, 32); sel(sWO, 24, 34)
    a(f's_lshl_b32 s{sT0}, s{sB}, 3'); a(f's_add_u32 s{sT0}, s{sT0}, s{sHG}')
    a(f's_lshl_b32 s{sT1}, s{sB}, 5'); a(f's_add_u32 s{sT1}, s{sT1}, s{sH}')
    a(f's_cmp_eq_u32 s{sISA}, 1')
    a(f's_cselect_b32 s{sT0}, s{sT0}, s{sT1}')
    a(f's_lshl_b32 s{sT0}, s{sT0}, 17')
    for sr in (sK, sV):
        a(f's_add_u32 s{sr}, s{sr}, s{sT0}'); a(f's_addc_u32 s{sr+1}, s{sr+1}, 0')
    a(f's_lshl_b32 s{sT0}, s{sB}, 16')
    a(f's_add_u32 s{sX}, s{sX}, s{sT0}'); a(f's_addc_u32 s{sX+1}, s{sX+1}, 0')
    for sr, size in ((sX, 65536), (sWQ, 4 << 20), (sK, 131072), (sV, 131072), (sWO, 4 << 20)):
        a(f's_and_b32 s{sr+1}, s{sr+1}, 0xffff')
        a(f's_mov_b32 s{sr+2}, {size}')
        a(f's_mov_b32 s{sr+3}, 0x20000')
    psz = 16384 if part_bf16 else 32768
    a(f's_xor_b32 s{sT0}, s{sISA}, 1'); a(f's_lshl_b32 s{sT0}, s{sT0}, 4'); a(f's_add_u32 s{sT0}, s{sT0}, s{sB}')
    a(f's_lshl_b32 s{sT0}, s{sT0}, 3'); a(f's_add_u32 s{sT0}, s{sT0}, s{sHG}')
    a(f's_lshl_b32 s{sT0}, s{sT0}, 2'); a(f's_add_u32 s{sT0}, s{sT0}, s{sW}')
    a(f's_mul_i32 s{sT0}, s{sT0}, {psz}')
    a(f's_add_u32 s{sT0}, s{sT0}, 0x100000')
    a(f's_add_u32 s{sWS}, s40, s{sT0}'); a(f's_addc_u32 s{sWS+1}, s41, 0')
    a(f's_and_b32 s{sWS+1}, s{sWS+1}, 0xffff'); a(f's_mov_b32 s{sWS+2}, {psz}'); a(f's_mov_b32 s{sWS+3}, 0x20000')
    a(f's_lshl_b32 s{sHOFF}, s{sH}, 8')
    a(f's_lshl_b32 s{sWOB}, s{sHG}, 19'); a(f's_lshl_b32 s{sT0}, s{sW}, 8'); a(f's_add_u32 s{sWOB}, s{sWOB}, s{sT0}')

    a(f's_lshl_b32 s{sT0}, s{sW}, 14')
    a(f's_lshl_b32 s{sT1}, s{sW}, 10')
    for ks in range(16):
        a(f's_add_u32 m0, s{sT1}, {LDS_X + ks*4096}')
        a(f'buffer_load_dwordx4 v{V_XA}, s[{sX}:{sX+3}], s{sT0} offen{wp} lds')
        a(f's_add_u32 s{sT0}, s{sT0}, 64')

    WB = [S, S + 32, VS, VS + 32]

    def wq_block_loads(slot, sks):
        L = []
        def first():
            a(f's_lshl_b32 s{sT2}, s{sks}, 18')
            a(f's_add_u32 s{sT2}, s{sT2}, s{sHOFF}')
            a(f'buffer_load_dwordx4 {vr(WB[slot])}, v{V_WQ}, s[{sWQ}:{sWQ+3}], s{sT2} offen{wp}')
        L.append(first)
        for i in range(1, 8):
            def nxt(i=i):
                a(f's_add_u32 s{sT2}, s{sT2}, 8192')
                a(f'buffer_load_dwordx4 {vr(WB[slot] + 4*i)}, v{V_WQ}, s[{sWQ}:{sWQ+3}], s{sT2} offen{wp}')
            L.append(nxt)
        return L

    def wo_block_loads(base, sks):
        L = []
        for i in range(8):
            def ld(i=i):
                if i == 0:
                    a(f's_lshr_b32 s{sT2}, s{sks}, 2'); a(f's_lshl_b32 s{sT2}, s{sT2}, 17')
                    a(f's_and_b32 s{sT3}, s{sks}, 3'); a(f's_lshl_b32 s{sT3}, s{sT3}, 13')
                    a(f's_add_u32 s{sT2}, s{sT2}, s{sT3}'); a(f's_add_u32 s{sT2}, s{sT2}, s{sWOB}')
                if i == 4:
                    a(f's_add_u32 s{sT2}, s{sT2}, 4096')
                a(f'buffer_load_dwordx4 {vr(base + 4*i)}, v{V_WO}, s[{sWO}:{sWO+3}], s{sT2} offen offset:{(i&3)*1024}{wp}')
            L.append(ld)
        return L

    def k_load(kt, s):
        def ld():
            if s == 0:
                a(f's_add_u32 s{sT0}, s{sKOFF}, {kt*4096}')
            a(f'buffer_load_dwordx4 {ar(KS + (kt*4+s)*4)}, v{V_K}, s[{sK}:{sK+3}], s{sT0} offen offset:{64*s}{kvp}')
        return ld

    def v_load(g, i):
        def ld():
            if i % 4 == 0:
                a(f's_add_u32 s{sT1}, s{sVOFF}, {g*8192 + (i//4)*4096}')
            a(f'buffer_load_dwordx4 {vr(VS + (g*8+i)*4)}, v{V_V}, s[{sV}:{sV+3}], s{sT1} offen offset:{(i%4)*256}{kvp}')
        return ld

    def perms(blk, fp, fset):
        L = []
        for half, sel_ in ((0, sSELL), (1, sSELH)):
            for p in range(4):
                def pm(half=half, sel_=sel_, p=p):
                    a(f'v_perm_b32 v{F + fset*8 + half*4 + p}, v{blk + (2*p+1)*4 + fp}, v{blk + (2*p)*4 + fp}, s{sel_}')
                L.append(pm)
        return L

    def gemm_block(blk, bfr, post=(), fill=()):
        post = list(post); fill = list(fill)
        for pm in perms(blk, 0, 0):
            pm()
        for fp in range(4):
            nxt = perms(blk, fp + 1, (fp + 1) & 1) if fp < 3 else post
            nxt = list(nxt)
            for half in range(2):
                f = 2*fp + half
                for qt in range(4):
                    acc = ACC + (f*4 + qt)*4
                    a(f'v_mfma_f32_16x16x32_bf16 {ar(acc)}, {vr(F + (fp&1)*8 + half*4)}, {vr(bfr[qt])}, {ar(acc)}')
                    if nxt:
                        nxt.pop(0)()
                    if fill:
                        fill.pop(0)()
            for c in nxt:
                c()
        for c in fill:
            c()

    def bfrag_reads(buf, lds_base, sks):
        L = []
        def adr():
            a(f's_lshl_b32 s{sT3}, s{sks}, 12')
            a(f'v_add_u32 v{V_XR}, s{sT3}, v{V_ST}')
        L.append(adr)
        for qt in range(4):
            def rd(qt=qt):
                a(f'ds_read_b128 {vr(BF + buf*16 + qt*4)}, v{V_XR} offset:{lds_base + qt*1024}')
            L.append(rd)
        return L

    def inc_ks(s):
        a(f's_add_u32 s{s}, s{s}, 1'); a(f's_and_b32 s{s}, s{s}, 15')

    def proj_phase(tag, lds_base, block_loads, last_fill):
        assert lds_base < 65536 or True
        def step(u, last):
            fill = []
            if not (last and u == 3):
                inc_ks(sKS)
                fill = bfrag_reads((u + 1) & 1, lds_base, sKS)
            if not last:
                post = block_loads(u, sKSP) + [lambda: inc_ks(sKSP)]
            else:
                post = last_fill(u)
            extra = extra_fill(u, last)
            gemm_block(WB[u], [BF + (u & 1)*16 + qt*4 for qt in range(4)], post=post, fill=fill + extra)
        a(f's_mov_b32 s{sCNT}, 3')
        a.flush_hazards()
        st0 = a.state()
        a.label(f'L_{tag}')
        for u in range(4):
            step(u, False)
        a(f's_sub_u32 s{sCNT}, s{sCNT}, 1')
        a(f's_cmp_lg_u32 s{sCNT}, 0')
        a.flush_hazards()
        st1 = a.state()
        a(f's_cbranch_scc1 L_{tag}')
        check_states(st0, st1, tag)
        for u in range(4):
            step(u, True)

    def check_states(st0, st1, tag):
        n = min(len(st0[0]), len(st1[0]))
        assert len(st0[0]) >= len(st1[0]) and st0[0][len(st0[0]) - n:] == st1[0][len(st1[0]) - n:], (tag, 'vm', len(st0[0]), len(st1[0]))
        n = min(len(st0[1]), len(st1[1]))
        assert len(st0[1]) == len(st1[1]) and st0[1] == st1[1], (tag, 'lg', st0[1], st1[1])

    a(f's_mov_b32 s{sKS}, s{sB}')
    a(f's_mov_b32 s{sKSP}, s{sB}')
    a(f's_mov_b32 s{sKOFF}, 0')
    a(f's_mov_b32 s{sVOFF}, 0')
    for u in range(4):
        for c in wq_block_loads(u, sKSP):
            c()
        inc_ks(sKSP)
    for i in range(128):
        a(f'v_accvgpr_write_b32 a{ACC+i}, 0')
    a.wait(vm=32)
    a('s_barrier')
    for c in bfrag_reads(0, LDS_X, sKS):
        c()
    extra_fill = lambda u, last: []
    def p1_last(u):
        L = []
        if u == 0:
            L += [k_load(kt, s) for kt in range(2) for s in range(4)]
        if u == 1:
            L += [k_load(kt, s) for kt in range(2, 4) for s in range(4)]
        if u == 2:
            L += [v_load(0, i) for i in range(8)]
        if u == 3:
            L += [v_load(1, i) for i in range(8)]
        return L
    proj_phase('p1', LDS_X, lambda u, sks: wq_block_loads(u, sks), p1_last)
    stamp(1)
    for qt in range(4):
        for r in range(4):
            for fp in range(4):
                t0 = V_TMP + (fp*2) % 16; t1 = t0 + 1
                a(f'v_accvgpr_read_b32 v{t0}, a{ACC + ((2*fp)*4 + qt)*4 + r}')
                a(f'v_accvgpr_read_b32 v{t1}, a{ACC + ((2*fp+1)*4 + qt)*4 + r}')
                a(f'v_cvt_pk_bf16_f32 v{Q + (qt*4 + r)*4 + fp}, v{t0}, v{t1}')
    for i in range(128):
        a(f'v_accvgpr_write_b32 a{ACC+i}, 0')
    a(f'v_mov_b32 v{V_MC}, {f32bits(-3.0e38)}')
    for qt in range(4):
        a(f'v_mov_b32 v{V_L+qt}, 0')
        a(f'v_mov_b32 v{V_NM+qt}, 0')


    def chunk(last, idx):
        if not last:
            a(f's_add_u32 s{sKOFF}, s{sKOFF}, 16384')
        for kt in range(4):
            for s in range(4):
                for qt in range(4):
                    sreg = S + (kt*4 + qt)*4
                    c = '0' if s == 0 else vr(sreg)
                    a(f'v_mfma_f32_16x16x32_bf16 {vr(sreg)}, {ar(KS + (kt*4+s)*4)}, {vr(Q + (qt*4+s)*4)}, {c}')
                if not last:
                    k_load(kt, s)()
        for qt in range(4):
            vals = [S + (kt*4 + qt)*4 + r for kt in range(4) for r in range(4)]
            a(f'v_max3_f32 v{V_M+qt}, v{vals[0]}, v{vals[1]}, v{vals[2]}')
            for i in range(3, 15, 2):
                a(f'v_max3_f32 v{V_M+qt}, v{V_M+qt}, v{vals[i]}, v{vals[i+1]}')
            a(f'v_max_f32 v{V_M+qt}, v{V_M+qt}, v{vals[15]}')
        a(f'v_permlane32_swap_b32 v{V_M}, v{V_M+1}')
        a(f'v_permlane32_swap_b32 v{V_M+2}, v{V_M+3}')
        a(f'v_max_f32 v{V_X}, v{V_M}, v{V_M+1}')
        a(f'v_max_f32 v{V_Y}, v{V_M+2}, v{V_M+3}')
        a(f'v_permlane16_swap_b32 v{V_X}, v{V_Y}')
        a(f'v_max_f32 v{V_X}, v{V_X}, v{V_Y}')
        a(f'v_mul_f32 v{V_X}, s{sC}, v{V_X}')
        a(f'v_sub_f32 v{V_Y}, v{V_X}, v{V_MC}')
        a(f'v_cmp_lt_f32 vcc, {f32bits(8.0)}, v{V_Y}')
        a.nop(1)
        a(f's_cbranch_vccz L_fast{idx}')
        st = a.state()
        a(f'v_max_f32 v{V_X}, v{V_X}, v{V_MC}')
        a(f'v_sub_f32 v{V_Y}, v{V_MC}, v{V_X}')
        a(f'v_exp_f32 v{V_Y}, v{V_Y}')
        a(f'v_mov_b32 v{V_MC}, v{V_X}')
        a(f'v_sub_f32 v{V_X}, 0, v{V_X}')
        def expand(src, dst):
            a(f'v_mov_b32 v{dst+0}, v{src}')
            a(f'v_mov_b32 v{dst+2}, v{src}')
            a(f'v_permlane16_swap_b32 v{dst+0}, v{dst+2}')
            a(f'v_mov_b32 v{dst+1}, v{dst+0}')
            a(f'v_mov_b32 v{dst+3}, v{dst+2}')
            a(f'v_permlane32_swap_b32 v{dst+0}, v{dst+1}')
            a(f'v_permlane32_swap_b32 v{dst+2}, v{dst+3}')
        expand(V_X, V_NM)
        expand(V_Y, V_AL)
        for qt in range(4):
            a(f'v_mul_f32 v{V_L+qt}, v{V_L+qt}, v{V_AL+qt}')
        for f in range(8):
            for qt in range(4):
                for r in range(4):
                    t = V_TMP + (qt*4 + r)
                    a(f'v_accvgpr_read_b32 v{t}, a{ACC + (f*4+qt)*4 + r}')
            for qt in range(4):
                for r in range(4):
                    t = V_TMP + (qt*4 + r)
                    a(f'v_mul_f32 v{t}, v{t}, v{V_AL+qt}')
            for qt in range(4):
                for r in range(4):
                    t = V_TMP + (qt*4 + r)
                    a(f'v_accvgpr_write_b32 a{ACC + (f*4+qt)*4 + r}, v{t}')
        a.flush_hazards()
        assert a.state() == st
        a.label(f'L_fast{idx}')
        for g in range(2):
            for qt in range(4):
                for kt in (2*g, 2*g + 1):
                    b = S + (kt*4 + qt)*4
                    for r in range(4):
                        a(f'v_fma_f32 v{b+r}, v{b+r}, s{sC}, v{V_NM+qt}')
                    for r in range(4):
                        a(f'v_exp_f32 v{b+r}, v{b+r}')
                    for r in range(4):
                        a(f'v_add_f32 v{V_L+qt}, v{V_L+qt}, v{b+r}')
                    d = S + ((2*g)*4 + qt)*4 + (kt & 1)*2
                    a(f'v_cvt_pk_bf16_f32 v{d}, v{b}, v{b+1}')
                    a(f'v_cvt_pk_bf16_f32 v{d+1}, v{b+2}, v{b+3}')
        if not last:
            a(f's_add_u32 s{sVOFF}, s{sVOFF}, 16384')
        for g in range(2):
            if not last:
                post = [v_load(g, i) for i in range(8)]
            else:
                post = wo_block_loads(WB[2 + g], sKSP) + [lambda: inc_ks(sKSP)]
            gemm_block(VS + g*32, [S + ((2*g)*4 + qt)*4 for qt in range(4)], post=post)

    stamp(2)
    a(f's_mov_b32 s{sCNT}, 7')
    a.flush_hazards()
    st0 = a.state()
    a.label('L_p2')
    chunk(False, 0)
    a(f's_sub_u32 s{sCNT}, s{sCNT}, 1')
    a(f's_cmp_lg_u32 s{sCNT}, 0')
    a.flush_hazards()
    st1 = a.state()
    a('s_cbranch_scc1 L_p2')
    check_states(st0, st1, 'p2')
    a(f's_add_u32 s{sKSP}, s{sB}, 2'); a(f's_and_b32 s{sKSP}, s{sKSP}, 15')
    chunk(True, 1)
    a(f's_mov_b32 s{sKS}, s{sB}')
    for c in wo_block_loads(WB[0], sKS): c()
    inc_ks(sKS)
    for c in wo_block_loads(WB[1], sKS): c()
    a(f's_mov_b32 s{sKS}, s{sB}')

    stamp(3)
    for qt in range(4):
        a(f'v_mov_b32 v{V_M+qt}, v{V_L+qt}')
    for qt in range(4):
        a(f'v_permlane32_swap_b32 v{V_L+qt}, v{V_M+qt}')
    for qt in range(4):
        a(f'v_add_f32 v{V_L+qt}, v{V_L+qt}, v{V_M+qt}')
    for qt in range(4):
        a(f'v_mov_b32 v{V_M+qt}, v{V_L+qt}')
    for qt in range(4):
        a(f'v_permlane16_swap_b32 v{V_L+qt}, v{V_M+qt}')
    for qt in range(4):
        a(f'v_add_f32 v{V_L+qt}, v{V_L+qt}, v{V_M+qt}')
    for qt in range(4):
        a(f'v_rcp_f32 v{V_AL+qt}, v{V_L+qt}')
    a(f's_lshl_b32 s{sT0}, s{sW}, 14')
    a(f's_add_u32 s{sT0}, s{sT0}, {LDS_O}')
    a(f'v_add_u32 v{V_XR}, s{sT0}, v{V_ST}')
    for qt in range(4):
        for r in range(4):
            for f in range(8):
                a(f'v_accvgpr_read_b32 v{V_TMP+f}, a{ACC + (f*4 + qt)*4 + r}')
            for f in range(8):
                a(f'v_mul_f32 v{V_TMP+f}, v{V_TMP+f}, v{V_AL+qt}')
            d = Q + (qt*4 + r)*4
            for fp in range(4):
                a(f'v_cvt_pk_bf16_f32 v{d+fp}, v{V_TMP+2*fp}, v{V_TMP+2*fp+1}')
            a(f'ds_write_b128 v{V_XR}, {vr(d)} offset:{(r*4+qt)*1024}')
    for i in range(128):
        a(f'v_accvgpr_write_b32 a{ACC+i}, 0')
    a.wait(lg=0)
    a('s_barrier')

    stamp(4)
    a(f'v_add_u32 v{V_ST}, {LDS_O}, v{V_ST}')
    for c in bfrag_reads(0, 0, sKS):
        c()
    a.wait(vm=0)
    a(f's_add_u32 s{sKSP}, s{sB}, 4'); a(f's_and_b32 s{sKSP}, s{sKSP}, 15')
    a.vm = [set(('v', WB[u] + 4*i + k) for k in range(4)) for u in range(4) for i in range(8)]
    proj_phase('p3', 0, lambda u, sks: wo_block_loads(WB[u], sks), lambda u: [])
    a(f'v_subrev_u32 v{V_ST}, {LDS_O}, v{V_ST}')
    stamp(5)
    if not part_bf16:
        for t in range(32):
            if t % 4 == 0:
                a(f's_mov_b32 s{sT0}, {t*1024}')
            a(f'buffer_store_dwordx4 {ar(ACC + t*4)}, v{V_ST}, s[{sWS}:{sWS+3}], s{sT0} offen offset:{(t%4)*1024}')
    else:
        for qt in range(4):
            a(f's_mov_b32 s{sT0}, {qt*4096}')
            for r in range(4):
                d = Q + (qt*4 + r)*4
                for f in range(8):
                    a(f'v_accvgpr_read_b32 v{V_TMP+f}, a{ACC + (f*4 + qt)*4 + r}')
                for fp in range(4):
                    a(f'v_cvt_pk_bf16_f32 v{d+fp}, v{V_TMP+2*fp}, v{V_TMP+2*fp+1}')
                a(f'buffer_store_dwordx4 {vr(d)}, v{V_ST}, s[{sWS}:{sWS+3}], s{sT0} offen offset:{r*1024}')
    if stamps:
        a.wait(vm=0)
        stamp(6)
        a('s_mov_b32 s84, s40'); a('s_and_b32 s85, s41, 0xffff'); a('s_mov_b32 s86, 0x100000'); a('s_mov_b32 s87, 0x20000')
        a(f's_lshl_b32 s{sT0}, s2, 2'); a(f's_add_u32 s{sT0}, s{sT0}, s{sW}'); a(f's_lshl_b32 s{sT0}, s{sT0}, 5')
        for i in range(8):
            a(f'v_mov_b32 v{16+i}, s{88+min(i,6)}')
        a('v_mov_b32 v28, 0')
        a('s_mov_b64 exec, 1')
        a(f'buffer_store_dwordx4 v[16:19], v28, s[84:87], s{sT0} offen')
        a(f'buffer_store_dwordx4 v[20:23], v28, s[84:87], s{sT0} offen offset:16')
    a.label('L_end')
    a('s_endpgm')

    r = Asm()
    r.raw('.globl reduce_kernel'); r.raw('.p2align 8'); r.raw('.type reduce_kernel,@function')
    r.label('reduce_kernel')
    r('s_cmp_ge_u32 s2, 256'); r('s_cbranch_scc1 L_rend')
    if stamps:
        r('s_memrealtime s[40:41]')
        r('s_load_dwordx2 s[30:31], s[0:1], 88')
    r('s_load_dwordx2 s[4:5], s[0:1], 80')
    r('s_load_dwordx2 s[6:7], s[0:1], 96')
    r('v_lshrrev_b32 v1, 6, v0'); r('v_readfirstlane_b32 s3, v1')
    r('v_and_b32 v1, 63, v0'); r('v_lshlrev_b32 v2, 4, v1')
    r('s_lshl_b32 s8, s2, 2'); r('s_add_u32 s8, s8, s3')
    r('s_lshr_b32 s9, s8, 5')
    r('s_lshr_b32 s10, s8, 3'); r('s_and_b32 s10, s10, 3')
    r('s_lshr_b32 s11, s8, 1'); r('s_and_b32 s11, s11, 3')
    r('s_and_b32 s12, s8, 1')
    r.wait(lg=0)
    r('s_add_u32 s16, s6, 0x100000'); r('s_addc_u32 s17, s7, 0'); r('s_and_b32 s17, s17, 0xffff')
    r(f's_mov_b32 s18, {psz*1024}'); r('s_mov_b32 s19, 0x20000')
    r('s_mov_b32 s20, s4'); r('s_and_b32 s21, s5, 0xffff'); r('s_mov_b32 s22, 0x200000'); r('s_mov_b32 s23, 0x20000')
    r('s_and_b32 s24, s9, 15'); r('s_lshl_b32 s24, s24, 17')
    r('s_lshr_b32 s25, s9, 4'); r('s_lshl_b32 s25, s25, 10'); r('s_add_u32 s24, s24, s25')
    r('s_lshl_b32 s25, s11, 15'); r('s_add_u32 s24, s24, s25')
    r('s_lshl_b32 s25, s10, 8'); r('s_add_u32 s24, s24, s25')
    r('v_and_b32 v3, 15, v1'); r('v_lshlrev_b32 v3, 11, v3'); r('v_lshrrev_b32 v4, 4, v1'); r('v_lshl_add_u32 v3, v4, 6, v3')
    if not part_bf16:
        r('s_lshl_b32 s13, s9, 20'); r('s_lshl_b32 s14, s10, 15'); r('s_add_u32 s13, s13, s14')
        r('s_lshl_b32 s14, s11, 10'); r('s_add_u32 s13, s13, s14')
        r('s_lshl_b32 s14, s12, 14'); r('s_add_u32 s13, s13, s14')
        for p in range(8):
            for ff in range(4):
                r(f's_add_u32 s14, s13, {p*131072 + ff*4096}')
                r(f'buffer_load_dwordx4 {vr(16 + (p*4+ff)*4)}, v2, s[16:19], s14 offen')
        for p in range(1, 8):
            for k in range(16):
                r(f'v_add_f32 v{16+k}, v{16+k}, v{16 + p*16 + k}')
        r('s_lshl_b32 s25, s12, 3'); r('s_add_u32 s24, s24, s25')
        for rr in range(4):
            r(f'v_cvt_pk_bf16_f32 v{8+2*rr}, v{16+rr}, v{20+rr}')
            r(f'v_cvt_pk_bf16_f32 v{9+2*rr}, v{24+rr}, v{28+rr}')
            r(f'buffer_store_dwordx2 v[{8+2*rr}:{9+2*rr}], v3, s[20:23], s24 offen offset:{rr*16}')
    else:
        r('s_lshl_b32 s13, s9, 19'); r('s_lshl_b32 s14, s10, 14'); r('s_add_u32 s13, s13, s14')
        r('s_lshl_b32 s14, s11, 12'); r('s_add_u32 s13, s13, s14')
        r('s_lshl_b32 s14, s12, 11'); r('s_add_u32 s13, s13, s14')
        for p in range(8):
            r(f's_add_u32 s14, s13, {p*65536}')
            for rr in range(2):
                r(f'buffer_load_dwordx4 {vr(32 + (p*2+rr)*4)}, v2, s[16:19], s14 offen offset:{rr*1024}')
        r('s_mov_b32 s26, 0xffff0000')
        for p in range(8):
            for k in range(8):
                src = 32 + p*8 + k
                if p == 0:
                    r(f'v_lshlrev_b32 v{16+2*k}, 16, v{src}')
                    r(f'v_and_b32 v{17+2*k}, s26, v{src}')
                else:
                    r(f'v_lshlrev_b32 v8, 16, v{src}')
                    r(f'v_and_b32 v9, s26, v{src}')
                    r(f'v_add_f32 v{16+2*k}, v{16+2*k}, v8')
                    r(f'v_add_f32 v{17+2*k}, v{17+2*k}, v9')
        r('s_lshl_b32 s25, s12, 5'); r('s_add_u32 s24, s24, s25')
        for rr in range(2):
            for k in range(4):
                r(f'v_cvt_pk_bf16_f32 v{8+rr*4+k}, v{16+rr*8+2*k}, v{17+rr*8+2*k}')
            r(f'buffer_store_dwordx4 {vr(8+rr*4)}, v3, s[20:23], s24 offen offset:{rr*16}')
    if stamps:
        r('s_cmp_lg_u32 s8, 0'); r('s_cbranch_scc1 L_rend')
        r.wait(vm=0)
        r('s_memrealtime s[42:43]')
        r('s_mov_b32 s32, s6'); r('s_and_b32 s33, s7, 0xffff'); r('s_mov_b32 s34, 0x100000'); r('s_mov_b32 s35, 0x20000')
        r('s_mov_b32 s36, s30'); r('s_and_b32 s37, s31, 0xffff'); r('s_mov_b32 s38, 256'); r('s_mov_b32 s39, 0x20000')
        r('v_lshlrev_b32 v2, 2, v1')
        r('v_cmp_lt_u32 vcc, 7, v1')
        r(f'v_mov_b32 v3, {1023*32 - 32}')
        r('v_cndmask_b32 v3, 0, v3, vcc')
        r('v_add_u32 v3, v3, v2')
        r('buffer_load_dword v4, v3, s[32:35], 0 offen')
        r.wait(vm=0, lg=0)
        r('v_mov_b32 v5, s40'); r('v_mov_b32 v6, s42')
        r('v_cmp_eq_u32 vcc, 7, v1'); r('v_cndmask_b32 v4, v4, v5, vcc')
        r('v_cmp_eq_u32 vcc, 15, v1'); r('v_cndmask_b32 v4, v4, v6, vcc')
        r('buffer_store_dword v4, v2, s[36:39], 0 offen')
    r.label('L_rend')
    r('s_endpgm')

    def desc(name, nv, acc):
        return '\n'.join([
            f'.amdhsa_kernel {name}',
            f'  .amdhsa_next_free_vgpr {nv}', '  .amdhsa_next_free_sgpr 102', f'  .amdhsa_accum_offset {acc}',
            '  .amdhsa_group_segment_fixed_size 0', '  .amdhsa_kernarg_size 104', '  .amdhsa_user_sgpr_count 2',
            '  .amdhsa_user_sgpr_kernarg_segment_ptr 1', '  .amdhsa_system_sgpr_workgroup_id_x 1', '.end_amdhsa_kernel'])
    tail = '.section .rodata,"a"\n.p2align 6\n' + desc(f'{NAME}_kernel', 512, 256) + '\n.p2align 6\n' + desc('reduce_kernel', 144, 144) + '\n'
    return a.text() + r.text() + tail


if __name__ == '__main__':
    import argparse
    ap = argparse.ArgumentParser()
    ap.add_argument('-o', default='k1.s')
    ap.add_argument('--kv', default='nt'); ap.add_argument('--w', default='')
    ap.add_argument('--xl', type=int, default=0); ap.add_argument('--stamps', action='store_true'); ap.add_argument('--bf16p', action='store_true')
    args = ap.parse_args()
    open(args.o, 'w').write(gen(args.kv, args.w, args.stamps, args.bf16p, args.xl))
```

```python
import sys, struct, math, os
sys.path.insert(0, 'work')
from asmfw import Asm

DIAG = int(os.environ.get('DIAG', '0'))
NAME = "concat_heads__gqa_block_cached__mha_block_cached__near_ridge"
HEADER = open('cdna_kernels/' + NAME + '.s.ref').read().split('; Override launch')[0]


def f32bits(x):
    return '0x%08x' % struct.unpack('<I', struct.pack('<f', x))[0]


def vr(b, n=4): return f'v[{b}:{b+n-1}]'
def ar(b, n=4): return f'a[{b}:{b+n-1}]'
def sr(b, n=4): return f's[{b}:{b+n-1}]'

V_LANE, V_V, V_WQ, V_WO, V_XR, V_ST = 1, 2, 3, 4, 5, 6
V_T0, V_T1, V_T2, V_T3 = 7, 8, 9, 10
V_MC, V_X, V_Y = 11, 12, 13
V_XB = 14
V_XR2 = 15
F = 16
V_KD = 32
V_KR = 36
V_NM = 40
V_M = 44
V_XDM = 44
V_AL = 48
V_ONE = 52
V_TMP = 56
SB = [64, 128]
VS = 192
ACC = 0
LACC = 128
Q = 144
KF = 208

sW, sB, sHG, sH, sISA = 3, 4, 5, 6, 7
sXW, sXKB, sR4, sRR, sKD = 8, 9, 10, 11, 12
sGRP, sOLD, sSPIN = 13, 14, 15
sX, sWQ, sK, sV, sWO, sWS = 44, 48, 52, 56, 60, 64
sSELL, sSELH, sC = 68, 69, 70
sT0, sT1, sT2, sT3 = 71, 72, 73, 74
sKS, sKSP, sCNT, sKOFF, sVOFF, sHOFF = 75, 76, 77, 78, 79, 80
sWOB, sKL, sT4, sT5, sP = 81, 82, 83, 84, 85
sRET = 86
sDBG, sNON, sFLG = 16, 42, 20
V_NON = 8
WS_OFF = 0x100000
FLG_OFF = 0x80000


def gen(kvA='', kvB='', w_pol='', stamps=False, inred=True, spin=4000, st_pol='sc1', force_timeout=False):
    a = Asm()
    wp = (' ' + w_pol) if w_pol else ''
    a.raw(HEADER.rstrip())
    if inred:
        a.raw("; @launch grid=(256,1,1) block=(256,1,1) lds=131072")
    else:
        a.raw(f"; @launch kernel={NAME}_kernel grid=(256,1,1) block=(256,1,1) lds=131072")
        a.raw("; @launch kernel=reduce_kernel grid=(256,1,1) block=(256,1,1) lds=0")
    if stamps:
        a.raw("; pstamps=1024")
    a.raw('.amdgcn_target "amdgcn-amd-amdhsa--gfx950"')
    a.raw('.text')
    a.raw(f'.globl {NAME}_kernel')
    a.raw('.p2align 8')
    a.raw(f'.type {NAME}_kernel,@function')
    a.label(f'{NAME}_kernel')
    a('s_cmp_ge_u32 s2, 256')
    a('s_cbranch_scc1 L_end')

    def stamp(i):
        if stamps:
            a.wait(lg=0)
            a('s_memrealtime s[98:99]')
            a.wait(lg=0)
            a(f's_mov_b32 s{88+i}, s98')
    stamp(0)
    a('s_load_dwordx16 s[16:31], s[0:1], 0')
    a('s_load_dwordx8 s[32:39], s[0:1], 64')
    a('s_load_dwordx2 s[40:41], s[0:1], 96')
    a('v_lshrrev_b32 v1, 6, v0')
    a(f'v_readfirstlane_b32 s{sW}, v1')
    a(f'v_and_b32 v{V_LANE}, 63, v0')
    a(f's_and_b32 s{sHG}, s2, 7')
    a(f's_lshr_b32 s{sT0}, s2, 3')
    a(f's_and_b32 s{sB}, s{sT0}, 15')
    a(f's_lshr_b32 s{sISA}, s{sT0}, 4')
    a(f's_lshl_b32 s{sH}, s{sHG}, 2')
    a(f's_add_u32 s{sH}, s{sH}, s{sW}')
    a(f's_lshl_b32 s{sKL}, s{sW}, 15')
    a(f's_lshl_b32 s{sXW}, s{sW}, 14')
    a(f's_and_b32 s{sXKB}, s{sB}, 3')
    a(f's_lshl_b32 s{sR4}, s{sXKB}, 2')
    a(f's_lshr_b32 s{sRR}, s{sB}, 2')
    a(f's_lshl_b32 s{sHOFF}, s{sH}, 8')
    a(f'v_and_b32 v{V_T0}, 15, v{V_LANE}')
    a(f'v_lshrrev_b32 v{V_T1}, 4, v{V_LANE}')
    for n in range(4):
        a(f'v_or_b32 v{V_T2}, {4*n}, v{V_T1}')
        a(f'v_xor_b32 v{V_T2}, v{V_T2}, v{V_T0}')
        a(f'v_lshlrev_b32 v{V_T2}, 4, v{V_T2}')
        a(f'v_lshl_add_u32 v{V_T2}, v{V_T1}, 10, v{V_T2}')
        a(f'v_add_u32 v{V_XDM+n}, {3*n*1024}, v{V_T2}')
    a(f'v_lshlrev_b32 v{V_WQ}, 16, v{V_T1}')
    a(f'v_lshl_add_u32 v{V_WQ}, v{V_T0}, 4, v{V_WQ}')
    a.wait(lg=0)
    a(f's_cmp_eq_u32 s{sISA}, 1')
    def sel(dst, pa, pb):
        a(f's_cselect_b32 s{dst}, s{pa}, s{pb}')
        a(f's_cselect_b32 s{dst+1}, s{pa+1}, s{pb+1}')
    sel(sX, 16, 26); sel(sWQ, 22, 32); sel(sK, 18, 28); sel(sV, 20, 30); sel(sWO, 24, 34)
    a(f's_lshl_b32 s{sT0}, s{sB}, 16')
    a(f's_add_u32 s{sX}, s{sX}, s{sT0}'); a(f's_addc_u32 s{sX+1}, s{sX+1}, 0')
    def fin_srd(r, size):
        a(f's_and_b32 s{r+1}, s{r+1}, 0xffff')
        a(f's_mov_b32 s{r+2}, {size}')
        a(f's_mov_b32 s{r+3}, 0x20000')
    fin_srd(sX, 65536); fin_srd(sWQ, 4 << 20)

    pol = {'p': ''}

    def need(tag):
        idx = [i for i, d in enumerate(a.vm) if tag in d]
        if idx:
            a.wait(vm=len(a.vm) - 1 - idx[-1])

    def inc(s):
        a(f's_add_u32 s{s}, s{s}, 1')

    def ks_of(dst, s):
        a(f's_add_u32 s{dst}, s{s}, s{sR4}'); a(f's_and_b32 s{dst}, s{dst}, 12')
        a(f's_add_u32 s{sT5}, s{s}, s{sRR}'); a(f's_and_b32 s{sT5}, s{sT5}, 3')
        a(f's_or_b32 s{dst}, s{dst}, s{sT5}')

    def x_dma():
        L = []
        for n in range(4):
            def ld(n=n):
                if n == 0:
                    a(f's_lshl_b32 s{sT0}, s{sXKB}, 8'); a(f's_add_u32 s{sT0}, s{sT0}, s{sXW}')
                    a(f's_lshl_b32 s{sT4}, s{sXKB}, 12'); a(f's_add_u32 s{sT4}, s{sT4}, s{sKL}')
                    a(f's_add_u32 m0, s{sT4}, 16384')
                a(f'buffer_load_dwordx4 v{V_XDM+n}, {sr(sX)}, s{sT0} offen offset:{n*1024}{wp} lds')
                a.vm[-1] = {('x', 0)}
                if n == 3:
                    a(f's_add_u32 s{sXKB}, s{sXKB}, 1'); a(f's_and_b32 s{sXKB}, s{sXKB}, 3')
            L.append(ld)
        return L

    def wq_block_loads(base, sks):
        L = []
        for i in range(8):
            def ld(i=i):
                if i == 0:
                    ks_of(sT2, sks)
                    a(f's_lshl_b32 s{sT2}, s{sT2}, 18')
                    a(f's_add_u32 s{sT2}, s{sT2}, s{sHOFF}')
                else:
                    a(f's_add_u32 s{sT2}, s{sT2}, 8192')
                a(f'buffer_load_dwordx4 {vr(base + 4*i)}, v{V_WQ}, {sr(sWQ)}, s{sT2} offen{wp}')
                if i == 7: inc(sks)
            L.append(ld)
        return L

    def wo_block_loads(base, sks):
        L = []
        for i in range(8):
            def ld(i=i):
                if i == 0:
                    ks_of(sT3, sks)
                    a(f's_lshr_b32 s{sT2}, s{sT3}, 2'); a(f's_lshl_b32 s{sT2}, s{sT2}, 17')
                    a(f's_and_b32 s{sT3}, s{sT3}, 3'); a(f's_lshl_b32 s{sT3}, s{sT3}, 13')
                    a(f's_add_u32 s{sT2}, s{sT2}, s{sT3}'); a(f's_add_u32 s{sT2}, s{sT2}, s{sWOB}')
                if i == 4:
                    a(f's_add_u32 s{sT2}, s{sT2}, 4096')
                a(f'buffer_load_dwordx4 {vr(base + 4*i)}, v{V_WO}, {sr(sWO)}, s{sT2} offen offset:{(i&3)*1024}{wp}')
                if i == 7: inc(sks)
            L.append(ld)
        return L

    def k_dma(buf, n):
        def ld():
            if n % 4 == 0:
                a(f's_add_u32 s{sT0}, s{sKOFF}, {n*1024}')
                a(f's_add_u32 m0, s{sKL}, {buf*16384 + n*1024}')
            a(f'buffer_load_dwordx4 v{V_KD + (n&3)}, {sr(sK)}, s{sT0} offen offset:{(n&3)*1024}{pol["p"]} lds')
            a.vm[-1] = {('k', buf)}
            if n == 15:
                a(f's_add_u32 s{sKOFF}, s{sKOFF}, 16384')
        return ld

    def k_dyn():
        L = []
        for u in range(4):
            def ld(u=u):
                if u == 0:
                    a(f's_mov_b32 m0, s{sKD}')
                a(f'buffer_load_dwordx4 v{V_KD + u}, {sr(sK)}, s{sKOFF} offen offset:{u*1024}{pol["p"]} lds')
                a.vm[-1] = {('k', 0)}
                if u == 3:
                    a(f's_add_u32 s{sKOFF}, s{sKOFF}, 4096')
                    a(f's_add_u32 s{sKD}, s{sKD}, 4096')
            L.append(ld)
        return L

    def v_load(g, i):
        def ld():
            if i % 4 == 0:
                a(f's_add_u32 s{sT1}, s{sVOFF}, {(i//4)*4096}')
            a(f'buffer_load_dwordx4 {vr(VS + (g*8+i)*4)}, v{V_V}, {sr(sV)}, s{sT1} offen offset:{(i%4)*256}{pol["p"]}')
            if i == 7:
                a(f's_add_u32 s{sVOFF}, s{sVOFF}, 8192')
        return ld

    def perms(blk, fp, fset):
        L = []
        for half, sel_ in ((0, sSELL), (1, sSELH)):
            for p in range(4):
                def pm(half=half, sel_=sel_, p=p):
                    a(f'v_perm_b32 v{F + fset*8 + half*4 + p}, v{blk + (2*p+1)*4 + fp}, v{blk + (2*p)*4 + fp}, s{sel_}')
                L.append(pm)
        return L

    def weave(prim, fill):
        tot = sum(c for c, _ in fill)
        done = 0; k = 0
        n = len(prim)
        for i, p in enumerate(prim):
            p()
            tgt = tot * (i + 1) / n
            while k < len(fill) and done + fill[k][0] * 0.5 <= tgt:
                fill[k][1](); done += fill[k][0]; k += 1
        while k < len(fill):
            fill[k][1](); k += 1

    def mix(src, ins, stride):
        out = []; vi = 0
        for i, x in enumerate(src):
            if i % stride == 0 and vi < len(ins):
                out.append(ins[vi]); vi += 1
            out.append(x)
        return out + ins[vi:]

    def gemm_prims(blk, bfr, ones=False, next_first=None, first=False):
        P = []
        for fp in range(4):
            nxt = perms(blk, fp + 1, (fp + 1) & 1) if fp < 3 else list(next_first or [])
            idx = 0
            for half in range(2):
                f = 2*fp + half
                for qt in range(4):
                    acc = ACC + (f*4 + qt)*4
                    def mf(acc=acc, fp=fp, half=half, qt=qt, extra=(nxt[idx] if idx < len(nxt) else None)):
                        c = '0' if first else ar(acc)
                        a(f'v_mfma_f32_16x16x32_bf16 {ar(acc)}, {vr(F + (fp&1)*8 + half*4)}, {bfr[qt]}, {c}')
                        if extra: extra()
                    P.append(mf); idx += 1
            if ones:
                def mo(qt=fp):
                    c = '0' if first else ar(LACC + qt*4)
                    a(f'v_mfma_f32_16x16x32_bf16 {ar(LACC + qt*4)}, {vr(V_ONE)}, {bfr[qt]}, {c}')
                P.append(mo)
        return P

    def x_reads(buf, sks):
        L = []
        def adr():
            ks_of(sT3, sks)
            a(f's_and_b32 s{sT4}, s{sT3}, 3'); a(f's_lshl_b32 s{sT4}, s{sT4}, 6')
            a(f's_lshr_b32 s{sT3}, s{sT3}, 2'); a(f's_lshl_b32 s{sT3}, s{sT3}, 12')
            a(f's_or_b32 s{sT3}, s{sT3}, s{sT4}')
            a(f'v_xor_b32 v{V_XR}, s{sT3}, v{V_XB}')
            a(f'v_add_u32 v{V_XR2}, 0x10000, v{V_XR}')
            inc(sks)
        L.append(adr)
        for qt in range(4):
            def rd(qt=qt):
                reg = V_XR if qt < 2 else V_XR2
                a(f'ds_read_b128 {ar(KF + buf*16 + qt*4)}, v{reg} offset:{(qt&1)*32768 + 16384}')
            L.append(rd)
        return L

    def o_reads(buf, sks):
        L = []
        def adr():
            ks_of(sT4, sks)
            a(f's_lshr_b32 s{sT3}, s{sT4}, 2'); a(f's_lshl_b32 s{sT3}, s{sT3}, 15')
            a(f's_and_b32 s{sT4}, s{sT4}, 3'); a(f's_lshl_b32 s{sT4}, s{sT4}, 12')
            a(f's_add_u32 s{sT3}, s{sT3}, s{sT4}')
            a(f'v_add_u32 v{V_XR}, s{sT3}, v{V_ST}')
            inc(sks)
        L.append(adr)
        for qt in range(4):
            def rd(qt=qt):
                a(f'ds_read_b128 {ar(KF + buf*16 + qt*4)}, v{V_XR} offset:{qt*1024}')
            L.append(rd)
        return L

    def loop(tag, count, body):
        a(f's_mov_b32 s{sCNT}, {count}')
        a.flush_hazards()
        entry = a.state()
        save_out, save_hist, save_n = a.out, list(a.hist), a.n_ins
        st = entry
        for _ in range(4):
            a.out = []; a.set_state(st); a.hist = []
            body()
            st2 = a.state()
            if st2 == st:
                break
            st = st2
        else:
            raise AssertionError('no steady state ' + tag)
        a.out, a.hist, a.n_ins = save_out, save_hist, save_n
        def covers(X, A, strict):
            for qi in (0, 1):
                E, B = X[qi], A[qi]
                for i, d in enumerate(E):
                    if not d:
                        continue
                    yE = len(E) - 1 - i
                    m = [len(B) - 1 - k for k, e in enumerate(B) if e == d]
                    if m:
                        if yE < min(m):
                            return False
                    elif strict:
                        return False
            return True
        assert covers(entry, st, False), tag
        a.set_state(st)
        a.label(f'L_{tag}')
        a.hist = []
        body()
        a(f's_sub_u32 s{sCNT}, s{sCNT}, 1')
        a(f's_cmp_lg_u32 s{sCNT}, 0')
        a.flush_hazards()
        assert covers(a.state(), st, True), tag
        a(f's_cbranch_scc1 L_{tag}')

    def proj_phase(tag, wb, breads, block_loads, extra, pre):
        for pm in perms(wb[0], 0, 0): pm()
        def step(it, u):
            fin = it == 'last' and u == 3
            pre(it, u)
            fill = []
            if not fin:
                fill += [(1, c) for c in breads((u + 1) & 1, sKS)]
            if it != 'last' or u == 0:
                fill += [(2, c) for c in block_loads(wb[(u - 1) % 4], sKSP)]
            fill += [(2, c) for c in extra(it, u)]
            nf = None if fin else perms(wb[(u + 1) % 4], 0, 0)
            weave(gemm_prims(wb[u], [ar(KF + (u & 1)*16 + qt*4) for qt in range(4)], next_first=nf,
                             first=(it == 'first' and u == 0)), fill)
        for u in range(4): step('first', u)
        loop(tag, 2, lambda: [step('mid', u) for u in range(4)])
        for u in range(4): step('last', u)

    def expand(src, dst):
        a(f'v_mov_b32 v{dst+0}, v{src}')
        a(f'v_mov_b32 v{dst+2}, v{src}')
        a(f'v_permlane16_swap_b32 v{dst+0}, v{dst+2}')
        a(f'v_mov_b32 v{dst+1}, v{dst+0}')
        a(f'v_mov_b32 v{dst+3}, v{dst+2}')
        a(f'v_permlane32_swap_b32 v{dst+0}, v{dst+1}')
        a(f'v_permlane32_swap_b32 v{dst+2}, v{dst+3}')

    WB = [SB[0], SB[0] + 32, SB[1], SB[1] + 32]
    a(f's_mov_b32 s{sKS}, 0')
    a(f's_mov_b32 s{sKSP}, 0')
    for c in x_dma(): c()
    for c in wq_block_loads(WB[0], sKSP): c()
    a(f's_mov_b32 s{sSELL}, 0x05040100')
    a(f's_mov_b32 s{sSELH}, 0x07060302')
    cval = (128 ** -0.5) * math.log2(math.e)
    a(f's_mov_b32 s{sC}, {f32bits(cval)}')
    a(f'v_lshlrev_b32 v{V_V}, 10, v{V_T1}')
    a(f'v_lshl_add_u32 v{V_V}, v{V_T0}, 4, v{V_V}')
    a(f'v_lshlrev_b32 v{V_WO}, 15, v{V_T1}')
    a(f'v_lshl_add_u32 v{V_WO}, v{V_T0}, 4, v{V_WO}')
    a(f'v_lshlrev_b32 v{V_ST}, 4, v{V_LANE}')
    for m in range(4):
        fm = (4*m) ^ (((4*m) & 4) << 1)
        a(f'v_or_b32 v{V_T2}, {fm}, v{V_T1}')
        a(f'v_xor_b32 v{V_T2}, v{V_T2}, v{V_T0}')
        a(f'v_lshlrev_b32 v{V_T2}, 4, v{V_T2}')
        a(f'v_lshl_add_u32 v{V_KD+m}, v{V_T1}, 8, v{V_T2}')
    a(f'v_and_b32 v{V_T2}, 4, v{V_T0}')
    a(f'v_lshlrev_b32 v{V_T2}, 1, v{V_T2}')
    a(f'v_xor_b32 v{V_T2}, v{V_T2}, v{V_T0}')
    a(f'v_lshlrev_b32 v{V_T3}, 2, v{V_T1}')
    a(f'v_xor_b32 v{V_T2}, v{V_T2}, v{V_T3}')
    for s in range(4):
        a(f'v_xor_b32 v{V_T3}, {s}, v{V_T2}')
        a(f'v_lshlrev_b32 v{V_T3}, 4, v{V_T3}')
        a(f'v_lshl_add_u32 v{V_T3}, v{V_T0}, 8, v{V_T3}')
        a(f'v_add_u32 v{V_KR+s}, s{sKL}, v{V_T3}')
    a(f'v_xor_b32 v{V_T2}, v{V_T1}, v{V_T0}')
    a(f'v_lshlrev_b32 v{V_T2}, 4, v{V_T2}')
    a(f'v_lshl_add_u32 v{V_XB}, v{V_T0}, 8, v{V_T2}')
    for i in range(4):
        a(f'v_mov_b32 v{V_ONE+i}, 0x3f803f80')
    a(f's_lshl_b32 s{sT0}, s{sB}, 3'); a(f's_add_u32 s{sT0}, s{sT0}, s{sHG}')
    a(f's_lshl_b32 s{sT1}, s{sB}, 5'); a(f's_add_u32 s{sT1}, s{sT1}, s{sH}')
    a(f's_cmp_eq_u32 s{sISA}, 1')
    a(f's_cselect_b32 s{sT0}, s{sT0}, s{sT1}')
    a(f's_lshl_b32 s{sT0}, s{sT0}, 17')
    for r_ in (sK, sV):
        a(f's_add_u32 s{r_}, s{r_}, s{sT0}'); a(f's_addc_u32 s{r_+1}, s{r_+1}, 0')
    fin_srd(sK, 131072); fin_srd(sV, 131072); fin_srd(sWO, 4 << 20)
    a(f's_xor_b32 s{sGRP}, s{sISA}, 1'); a(f's_lshl_b32 s{sGRP}, s{sGRP}, 4'); a(f's_add_u32 s{sGRP}, s{sGRP}, s{sB}')
    a(f's_lshl_b32 s{sT0}, s{sGRP}, 19')
    a(f's_add_u32 s{sT0}, s{sT0}, {WS_OFF}')
    a(f's_add_u32 s{sWS}, s40, s{sT0}'); a(f's_addc_u32 s{sWS+1}, s41, 0')
    fin_srd(sWS, 524288)
    a(f's_lshl_b32 s{sWOB}, s{sHG}, 19'); a(f's_lshl_b32 s{sT0}, s{sW}, 8'); a(f's_add_u32 s{sWOB}, s{sWOB}, s{sT0}')
    a(f's_mov_b32 s{sKOFF}, 0')
    a(f's_mov_b32 s{sVOFF}, 0')
    a(f's_mov_b32 s{sKD}, s{sKL}')
    if inred:
        a(f's_mov_b32 s{sDBG}, s38'); a(f's_mov_b32 s{sDBG+1}, s39')
        fin_srd(sDBG, 256)
        a('s_memrealtime s[96:97]')
        a.wait(lg=0)
        a(f's_or_b32 s{sNON}, s96, 1')
        a(f'v_mov_b32 v{V_NON}, s{sNON}')
        a(f'v_mov_b32 v{V_NON+1}, 0')
        a(f's_cmp_lg_u32 s{sW}, 0')
        a('s_cbranch_scc1 L_nononce')
        a('s_mov_b64 exec, 1')
        a(f'buffer_atomic_cmpswap v[{V_NON}:{V_NON+1}], v{V_NON+1}, {sr(sDBG)}, 0 offen offset:128 sc0 sc1')
        a.vm.pop()
        a('s_mov_b64 exec, -1')
        a.label('L_nononce')
    for u in (1, 2):
        for c in wq_block_loads(WB[u], sKSP): c()
    if DIAG == 1: stamp(1)
    need(('x', 0))
    a('s_barrier')
    if DIAG == 1: stamp(2)
    for c in x_reads(0, sKS): c()

    two_paths = kvA != kvB
    if two_paths:
        a(f's_cmp_eq_u32 s{sISA}, 1')
        a.flush_hazards()
        a('s_cbranch_scc1 L_pathA')
    fork_state = a.state()

    def main_path(sfx, kv):
        pol['p'] = (' ' + kv) if kv else ''
        def extra(it, u):
            L = []
            if it != 'last' and u == 0: L += x_dma()
            if u == 1: L += k_dyn()
            if it == 'last' and u >= 1:
                lo, hi = {1: (0, 4), 2: (4, 10), 3: (10, 16)}[u]
                L += [v_load(n // 8, n % 8) for n in range(lo, hi)]
            return L
        def pre(it, u):
            if it != 'last' and u == 3:
                need(('x', 0))
                a('s_barrier')
        proj_phase('p1' + sfx, WB, x_reads, wq_block_loads, extra, pre)
        stamp(1 if not DIAG else 3)
        a.wait(lg=0)
        a('s_barrier')
        if inred:
            a(f'v_readfirstlane_b32 s{sT0}, v{V_NON}')
            a(f's_cmp_eq_u32 s{sT0}, 0')
            a(f's_cselect_b32 s{sNON}, s{sNON}, s{sT0}')
        n = 0
        for qt in range(4):
            for r in range(4):
                k_dma(1, n)(); n += 1
                for fp in range(4):
                    t0 = V_TMP + (fp*2); t1 = t0 + 1
                    a(f'v_accvgpr_read_b32 v{t0}, a{ACC + ((2*fp)*4 + qt)*4 + r}')
                    a(f'v_accvgpr_read_b32 v{t1}, a{ACC + ((2*fp+1)*4 + qt)*4 + r}')
                for fp in range(4):
                    t0 = V_TMP + (fp*2); t1 = t0 + 1
                    a(f'v_cvt_pk_bf16_f32 v{t0}, v{t0}, v{t1}')
                for fp in range(4):
                    a(f'v_accvgpr_write_b32 a{Q + (qt*4 + r)*4 + fp}, v{V_TMP + fp*2}')
        stamp(2 if not DIAG else 4)


        def qk_prims(buf, Sd):
            def rd(n):
                kt, s = divmod(n, 4)
                a(f'ds_read_b128 {ar(KF + (n % 8)*4)}, v{V_KR+s} offset:{buf*16384 + kt*4096}')
            P = []
            pre_ = [lambda n=n: rd(n) for n in range(4)]
            for n in range(16):
                kt, s = divmod(n, 4)
                for qt in range(4):
                    def mf(n=n, kt=kt, s=s, qt=qt):
                        sreg = Sd + (kt*4 + qt)*4
                        c = '0' if s == 0 else vr(sreg)
                        a(f'v_mfma_f32_16x16x32_bf16 {vr(sreg)}, {ar(KF + (n % 8)*4)}, {ar(Q + (qt*4+s)*4)}, {c}')
                        if qt == 0 and n + 4 < 16:
                            rd(n + 4)
                    P.append(mf)
            return pre_, P

        def p_fill(Sc, g):
            L = []
            for qt in range(4):
                for kt in (2*g, 2*g + 1):
                    b = Sc + (kt*4 + qt)*4
                    for r in range(4):
                        L.append((1, lambda b=b, r=r, qt=qt: a(f'v_fma_f32 v{b+r}, v{b+r}, s{sC}, v{V_NM+qt}')))
                    for r in range(4):
                        L.append((2, lambda b=b, r=r: a(f'v_exp_f32 v{b+r}, v{b+r}')))
                    d = Sc + ((2*g)*4 + qt)*4 + (kt & 1)*2
                    L.append((1, lambda b=b, d=d: a(f'v_cvt_pk_bf16_f32 v{d}, v{b}, v{b+1}')))
                    L.append((1, lambda b=b, d=d: a(f'v_cvt_pk_bf16_f32 v{d+1}, v{b+2}, v{b+3}')))
            return L

        def max_fill(Sn):
            L = []
            for i in range(8):
                for qt in range(4):
                    vals = [Sn + (kt*4 + qt)*4 + r for kt in range(4) for r in range(4)]
                    if i == 0:
                        L.append((1, lambda qt=qt, vals=vals: a(f'v_max3_f32 v{V_M+qt}, v{vals[0]}, v{vals[1]}, v{vals[2]}')))
                    elif i < 7:
                        L.append((1, lambda qt=qt, vals=vals, i=i: a(f'v_max3_f32 v{V_M+qt}, v{V_M+qt}, v{vals[2*i+1]}, v{vals[2*i+2]}')))
                    else:
                        L.append((1, lambda qt=qt, vals=vals: a(f'v_max_f32 v{V_M+qt}, v{V_M+qt}, v{vals[15]}')))
            for t in (f'v_permlane32_swap_b32 v{V_M}, v{V_M+1}', f'v_permlane32_swap_b32 v{V_M+2}, v{V_M+3}',
                      f'v_max_f32 v{V_X}, v{V_M}, v{V_M+1}', f'v_max_f32 v{V_Y}, v{V_M+2}, v{V_M+3}',
                      f'v_permlane16_swap_b32 v{V_X}, v{V_Y}', f'v_max_f32 v{V_X}, v{V_X}, v{V_Y}',
                      f'v_mul_f32 v{V_X}, s{sC}, v{V_X}'):
                L.append((1, lambda t=t: a(t)))
            return L

        def check_rescale():
            a(f'v_sub_f32 v{V_Y}, v{V_X}, v{V_MC}')
            a(f'v_cmp_lt_f32 vcc, {f32bits(8.0)}, v{V_Y}')
            a.flush_hazards()
            lbl = f'L_fast{sfx}_{a.n_ins}'
            a(f's_cbranch_vccz {lbl}')
            a(f's_call_b64 s[{sRET}:{sRET+1}], L_slow')
            a.label(lbl)

        def iteration(c, has_qk=True, has_kdma=True, has_v=True, tail_fill=None, first_fill=None, first=False):
            Sc, Sn = SB[c & 1], SB[(c + 1) & 1]
            nb = (c + 1) & 1
            pf0, pf1 = p_fill(Sc, 0), p_fill(Sc, 1)
            vg1 = [(2, v_load(1, i)) for i in range(8)] if first_fill is None else first_fill
            cut = len(pf1) // 2
            first_perms = [(1, p) for p in perms(VS, 0, 0)]
            if has_qk:
                need(('k', nb))
                pre_, P = qk_prims(nb, Sn)
                for p in pre_: p()
                weave(P, mix(pf0 + pf1[:cut], vg1, 5) + first_perms)
            else:
                for _, f in mix(pf0 + pf1[:cut], vg1, 4) + first_perms: f()
            kd = [(2, k_dma(nb, n)) for n in range(16)] if (has_kdma and has_qk) else []
            if kd:
                a.wait(lg=0)
            P = gemm_prims(VS, [vr(Sc + qt*4) for qt in range(4)], ones=True, next_first=perms(VS + 32, 0, 0), first=first)
            weave(P, mix(pf1[cut:], kd[:8], 5))
            P = gemm_prims(VS + 32, [vr(Sc + (8 + qt)*4) for qt in range(4)], ones=True)
            vg0 = [(2, v_load(0, i)) for i in range(8)] if has_v else list(tail_fill or [])
            mem = vg0 + kd[8:]
            src = max_fill(Sn) if has_qk else []
            weave(P, mix(src, mem, 2))
            if has_qk:
                check_rescale()

        need(('k', 0))
        pre_, P = qk_prims(0, SB[0])
        for p in pre_ + P: p()
        a.wait(lg=0)
        kd = [(1, k_dma(0, n)) for n in range(16)]
        for _, f in mix(max_fill(SB[0]), kd, 2): f()
        a(f'v_mov_b32 v{V_MC}, v{V_X}')
        a(f'v_sub_f32 v{V_X}, 0, v{V_X}')
        expand(V_X, V_NM)
        iteration(0, first_fill=[], first=True)
        loop('p2' + sfx, 2, lambda: [iteration(1), iteration(2)])
        iteration(5, has_kdma=False)
        iteration(6, has_kdma=False)
        WB3 = [SB[0], SB[0] + 32, VS, VS + 32]
        a(f's_mov_b32 s{sKSP}, 0')
        ff = [(2, v_load(1, i)) for i in range(8)]
        for u in range(2):
            ff += [(2, c) for c in wo_block_loads(WB3[u], sKSP)]
        tf = [(2, c) for c in wo_block_loads(WB3[2], sKSP)]
        iteration(7, has_qk=False, has_v=False, tail_fill=tf, first_fill=ff)
        if not DIAG: stamp(3)
        return WB3

    WB3 = main_path('B', kvB)
    if two_paths:
        a.flush_hazards()
        endB = a.state()
        a('s_branch L_join')
        a.label('L_pathA')
        a.set_state(fork_state); a.hist = []
        main_path('A', kvA)
        a.flush_hazards()
        assert a.state() == endB
        a.label('L_join')

    for qt in range(4):
        a(f'v_accvgpr_read_b32 v{V_AL+qt}, a{LACC + qt*4}')
    for qt in range(4):
        a(f'v_rcp_f32 v{V_AL+qt}, v{V_AL+qt}')
    a(f'v_add_u32 v{V_XR}, s{sKL}, v{V_ST}')
    T = SB[1]
    for qt in range(4):
        for r in range(4):
            t = T + ((qt*4 + r) & 3)*12
            for f in range(8):
                a(f'v_accvgpr_read_b32 v{t+f}, a{ACC + (f*4 + qt)*4 + r}')
            for f in range(8):
                a(f'v_mul_f32 v{t+f}, v{t+f}, v{V_AL+qt}')
            for fp in range(4):
                a(f'v_cvt_pk_bf16_f32 v{t+8+fp}, v{t+2*fp}, v{t+2*fp+1}')
            a(f'ds_write_b128 v{V_XR}, {vr(t+8)} offset:{(r*4+qt)*1024}')
    a.wait(lg=0)
    a('s_barrier')
    if not DIAG: stamp(4)

    a(f's_mov_b32 s{sKS}, 0')
    for c in o_reads(0, sKS): c()
    proj_phase('p3', WB3, o_reads, wo_block_loads, lambda it, u: [], lambda it, u: None)
    if not DIAG: stamp(5)
    sp = (' ' + st_pol) if (st_pol and inred) else ''
    a(f's_lshl_b32 s{sT1}, s{sH}, 14')
    for qt in range(4):
        a(f's_add_u32 s{sT0}, s{sT1}, {qt*4096}')
        for r in range(4):
            t = T + ((qt*4 + r) & 3)*12
            for f in range(8):
                a(f'v_accvgpr_read_b32 v{t+f}, a{ACC + (f*4 + qt)*4 + r}')
            for fp in range(4):
                a(f'v_cvt_pk_bf16_f32 v{t+8+fp}, v{t+2*fp}, v{t+2*fp+1}')
            a(f'buffer_store_dwordx4 {vr(t+8)}, v{V_ST}, {sr(sWS)}, s{sT0} offen offset:{r*1024}{sp}')

    def reduce_share(r, load_srd, out_srd, s_src, s_dst, vlin, vout, lp):
        for p in range(8):
            r(f's_add_u32 s{sT2}, s{s_src}, {p*65536}')
            for rr in range(2):
                r(f'buffer_load_dwordx4 {vr(96 + (p*2+rr)*4)}, v{vlin}, {sr(load_srd)}, s{sT2} offen offset:{rr*1024}{lp}')
        r(f's_mov_b32 s{sT3}, 0xffff0000')
        for p in range(8):
            for k in range(8):
                src = 96 + p*8 + k
                if p == 0:
                    r(f'v_lshlrev_b32 v{64+2*k}, 16, v{src}')
                    r(f'v_and_b32 v{65+2*k}, s{sT3}, v{src}')
                else:
                    r(f'v_lshlrev_b32 v{80+(k&3)*2}, 16, v{src}')
                    r(f'v_and_b32 v{81+(k&3)*2}, s{sT3}, v{src}')
                    r(f'v_add_f32 v{64+2*k}, v{64+2*k}, v{80+(k&3)*2}')
                    r(f'v_add_f32 v{65+2*k}, v{65+2*k}, v{81+(k&3)*2}')
        for rr in range(2):
            for k in range(4):
                r(f'v_cvt_pk_bf16_f32 v{88+rr*4+k}, v{64+rr*8+2*k}, v{65+rr*8+2*k}')
            r(f'buffer_store_dwordx4 {vr(88+rr*4)}, v{vout}, {sr(out_srd)}, s{s_dst} offen offset:{rr*16}')

    if inred:
        sOUT = sX
        a(f's_lshl_b32 s{sT0}, s{sB}, 17')
        a(f's_add_u32 s{sOUT}, s36, s{sT0}'); a(f's_addc_u32 s{sOUT+1}, s37, 0')
        fin_srd(sOUT, 131072)
        a(f's_lshl_b32 s{sT0}, s{sGRP}, 8'); a(f's_add_u32 s{sT0}, s{sT0}, {FLG_OFF}')
        a(f's_add_u32 s{sFLG}, s40, s{sT0}'); a(f's_addc_u32 s{sFLG+1}, s41, 0')
        fin_srd(sFLG, 64)
        a(f's_lshl_b32 s{sT5}, s{sHG}, 2')
        a(f'v_and_b32 v{V_T0}, 15, v{V_LANE}'); a(f'v_lshlrev_b32 v{V_T0}, 11, v{V_T0}')
        a(f'v_lshrrev_b32 v{V_T1}, 4, v{V_LANE}'); a(f'v_lshl_add_u32 v{V_T0}, v{V_T1}, 6, v{V_T0}')
        a(f'v_mov_b32 v{V_T2}, 0')
        a(f'v_mov_b32 v{V_Y}, s{sNON}')
        a(f'v_lshlrev_b32 v{V_XR}, 2, v{V_LANE}')
        a.wait(vm=0)
        a('s_barrier')
        if not DIAG: stamp(6)
        a(f's_cmp_lg_u32 s{sW}, 0')
        a('s_cbranch_scc1 L_wait')
        a('s_mov_b64 exec, 1')
        a(f'buffer_store_dword v{V_Y}, v{V_T2}, {sr(sFLG)}, s{sT5} offen sc1')
        a('s_mov_b64 exec, 0xffff')
        a(f's_lshl_b32 s{sP}, 1, s{sHG}')
        a(f's_mov_b32 s{sSPIN}, {spin if not force_timeout else 1}')
        a.label('L_poll')
        a(f'buffer_load_dword v{V_T3}, v{V_XR}, {sr(sFLG)}, 0 offen sc1')
        a.force_wait('vmcnt(0)')
        a(f'v_cmp_eq_u32 vcc, v{V_T3}, v{V_Y}')
        a.flush_hazards()
        a(f's_and_b32 s{sT0}, vcc_lo, 0xff')
        a(f's_cmp_eq_u32 s{sT0}, 0xff')
        a('s_cbranch_scc1 L_arrived')
        a(f's_cmp_eq_u32 s{sSPIN}, 0')
        a('s_cbranch_scc1 L_giveup')
        a('s_sleep 1')
        a(f's_sub_u32 s{sSPIN}, s{sSPIN}, 1')
        a(f's_cmp_lg_u32 s{sSPIN}, 0')
        a('s_cbranch_scc1 L_poll')
        a('s_mov_b64 exec, 1')
        a(f'buffer_store_dword v{V_Y}, v{V_T2}, {sr(sFLG)}, s{sT5} offen offset:32 sc1')
        a.force_wait('vmcnt(0)')
        a('s_mov_b64 exec, 0xffff')
        a('s_branch L_poll')
        a.label('L_giveup')
        a(f's_mov_b32 s{sP}, 0')
        a('s_branch L_pub0')
        a.label('L_arrived')
        a(f's_lshr_b32 s{sT0}, vcc_lo, 8')
        a(f's_and_b32 s{sT0}, s{sT0}, 0xff')
        a(f's_or_b32 s{sP}, s{sP}, s{sT0}')
        a.label('L_pub0')
        a('s_mov_b64 exec, 1')
        a.label('L_publish')
        a(f'v_mov_b32 v{V_T3}, s{sP}')
        a(f'ds_write_b32 v{V_T2}, v{V_T3} offset:16384')
        a('s_mov_b64 exec, -1')
        a.wait(lg=0)
        a.label('L_wait')
        a('s_barrier')
        a(f'ds_read_b32 v{V_T3}, v{V_T2} offset:16384')
        a(f'v_readfirstlane_b32 s{sP}, v{V_T3}')
        a.label('L_share')
        a(f's_cmp_eq_u32 s{sP}, 0')
        a('s_cbranch_scc1 L_fin')
        a(f's_ff1_i32_b32 s{sT0}, s{sP}')
        a(f's_lshl_b32 s{sT1}, 1, s{sT0}')
        a(f's_xor_b32 s{sP}, s{sP}, s{sT1}')
        a(f's_lshl_b32 s{sT0}, s{sT0}, 2'); a(f's_add_u32 s{sT0}, s{sT0}, s{sW}')
        a(f's_lshl_b32 s{sKS}, s{sT0}, 11')
        a(f's_lshr_b32 s{sT1}, s{sT0}, 1'); a(f's_and_b32 s{sT1}, s{sT1}, 3'); a(f's_lshl_b32 s{sKSP}, s{sT1}, 15')
        a(f's_lshr_b32 s{sT1}, s{sT0}, 3'); a(f's_lshl_b32 s{sT1}, s{sT1}, 8'); a(f's_add_u32 s{sKSP}, s{sKSP}, s{sT1}')
        a(f's_and_b32 s{sT1}, s{sT0}, 1'); a(f's_lshl_b32 s{sT1}, s{sT1}, 5'); a(f's_add_u32 s{sKSP}, s{sKSP}, s{sT1}')
        a(f's_xor_b32 s{sT1}, s{sISA}, 1'); a(f's_lshl_b32 s{sT1}, s{sT1}, 10'); a(f's_add_u32 s{sKSP}, s{sKSP}, s{sT1}')
        reduce_share(a, sWS, sOUT, sKS, sKSP, V_ST, V_T0, ' sc1')
        a.wait(vm=0)
        a.flush_hazards()
        a('s_branch L_share')
        a.label('L_fin')
    if stamps:
        a.wait(vm=0)
        stamp(7 if inred else 6)
        if not inred: a('s_mov_b32 s95, s94')
        a('s_mov_b32 s52, s40'); a('s_and_b32 s53, s41, 0xffff'); a('s_mov_b32 s54, 0x100000'); a('s_mov_b32 s55, 0x20000')
        a(f's_lshl_b32 s{sT0}, s2, 2'); a(f's_add_u32 s{sT0}, s{sT0}, s{sW}'); a(f's_lshl_b32 s{sT0}, s{sT0}, 5')
        for i in range(8):
            a(f'v_mov_b32 v{16+i}, s{88+i}')
        a('v_mov_b32 v28, 0')
        a('s_mov_b64 exec, 1')
        a(f'buffer_store_dwordx4 v[16:19], v28, s[52:55], s{sT0} offen')
        a(f'buffer_store_dwordx4 v[20:23], v28, s[52:55], s{sT0} offen offset:16')
    a.label('L_end')
    a('s_endpgm')

    a.label('L_slow')
    a.set_state(([], [])); a.hist = []
    a(f'v_max_f32 v{V_X}, v{V_X}, v{V_MC}')
    a(f'v_sub_f32 v{V_Y}, v{V_MC}, v{V_X}')
    a(f'v_exp_f32 v{V_Y}, v{V_Y}')
    a(f'v_mov_b32 v{V_MC}, v{V_X}')
    a(f'v_sub_f32 v{V_X}, 0, v{V_X}')
    expand(V_X, V_NM)
    expand(V_Y, V_AL)
    for f in range(9):
        for qh in range(2):
            rr = [(qt, r) for qt in (2*qh, 2*qh + 1) for r in range(4)]
            for k, (qt, r) in enumerate(rr):
                a(f'v_accvgpr_read_b32 v{V_TMP+k}, a{ACC + (f*4+qt)*4 + r}')
            for k, (qt, r) in enumerate(rr):
                a(f'v_mul_f32 v{V_TMP+k}, v{V_TMP+k}, v{V_AL+qt}')
            for k, (qt, r) in enumerate(rr):
                a(f'v_accvgpr_write_b32 a{ACC + (f*4+qt)*4 + r}, v{V_TMP+k}')
    a.flush_hazards()
    a(f's_setpc_b64 s[{sRET}:{sRET+1}]')

    def desc(name, nv, acc):
        return '\n'.join([
            f'.amdhsa_kernel {name}',
            f'  .amdhsa_next_free_vgpr {nv}', '  .amdhsa_next_free_sgpr 102', f'  .amdhsa_accum_offset {acc}',
            '  .amdhsa_group_segment_fixed_size 0', '  .amdhsa_kernarg_size 104', '  .amdhsa_user_sgpr_count 2',
            '  .amdhsa_user_sgpr_kernarg_segment_ptr 1', '  .amdhsa_system_sgpr_workgroup_id_x 1', '.end_amdhsa_kernel'])
    tail = '.section .rodata,"a"\n.p2align 6\n' + desc(f'{NAME}_kernel', 512, 256) + '\n'
    rtext = ''
    if not inred:
        r = Asm()
        r.raw('.globl reduce_kernel'); r.raw('.p2align 8'); r.raw('.type reduce_kernel,@function')
        r.label('reduce_kernel')
        r('s_cmp_ge_u32 s2, 256'); r('s_cbranch_scc1 L_rend')
        r('s_load_dwordx2 s[4:5], s[0:1], 80')
        r('s_load_dwordx2 s[6:7], s[0:1], 96')
        r('v_lshrrev_b32 v1, 6, v0'); r('v_readfirstlane_b32 s3, v1')
        r('v_and_b32 v1, 63, v0'); r('v_lshlrev_b32 v2, 4, v1')
        r('s_lshl_b32 s8, s2, 2'); r('s_add_u32 s8, s8, s3')
        r('s_lshr_b32 s9, s8, 5')
        r('s_and_b32 s10, s8, 31')
        r.wait(lg=0)
        r(f's_add_u32 s16, s6, {WS_OFF}'); r('s_addc_u32 s17, s7, 0'); r('s_and_b32 s17, s17, 0xffff')
        r(f's_mov_b32 s18, {16 << 20}'); r('s_mov_b32 s19, 0x20000')
        r('s_mov_b32 s20, s4'); r('s_and_b32 s21, s5, 0xffff'); r('s_mov_b32 s22, 0x200000'); r('s_mov_b32 s23, 0x20000')
        r('s_and_b32 s24, s9, 15'); r('s_lshl_b32 s24, s24, 17')
        r('s_lshr_b32 s25, s9, 4'); r('s_lshl_b32 s25, s25, 10'); r('s_add_u32 s24, s24, s25')
        r('s_lshr_b32 s25, s10, 1'); r('s_and_b32 s25, s25, 3'); r('s_lshl_b32 s25, s25, 15'); r('s_add_u32 s24, s24, s25')
        r('s_lshr_b32 s25, s10, 3'); r('s_lshl_b32 s25, s25, 8'); r('s_add_u32 s24, s24, s25')
        r('s_and_b32 s25, s10, 1'); r('s_lshl_b32 s25, s25, 5'); r('s_add_u32 s24, s24, s25')
        r('v_and_b32 v3, 15, v1'); r('v_lshlrev_b32 v3, 11, v3'); r('v_lshrrev_b32 v4, 4, v1'); r('v_lshl_add_u32 v3, v4, 6, v3')
        r('s_lshl_b32 s13, s9, 19'); r('s_lshl_b32 s14, s10, 11'); r('s_add_u32 s13, s13, s14')
        reduce_share(r, 16, 20, 13, 24, 2, 3, '')
        r.label('L_rend')
        r('s_endpgm')
        rtext = r.text()
        tail += '.p2align 6\n' + desc('reduce_kernel', 160, 160) + '\n'
    return a.text() + rtext + tail


if __name__ == '__main__':
    import argparse
    ap = argparse.ArgumentParser()
    ap.add_argument('-o', default='k3.s')
    ap.add_argument('--kvA', default=''); ap.add_argument('--kvB', default=''); ap.add_argument('--w', default='')
    ap.add_argument('--stamps', action='store_true'); ap.add_argument('--sep', action='store_true')
    ap.add_argument('--timeout', action='store_true')
    args = ap.parse_args()
    open(args.o, 'w').write(gen(args.kvA, args.kvB, args.w, args.stamps, inred=not args.sep, force_timeout=args.timeout))
```

```python
import sys, struct, math, os
sys.path.insert(0, 'work')
from asmfw import Asm

DIAG = int(os.environ.get('DIAG', '0'))
NAME = "concat_heads__gqa_block_cached__mha_block_cached__near_ridge"
HEADER = open('cdna_kernels/' + NAME + '.s.ref').read().split('; Override launch')[0]


def f32bits(x):
    return '0x%08x' % struct.unpack('<I', struct.pack('<f', x))[0]


def vr(b, n=4): return f'v[{b}:{b+n-1}]'
def ar(b, n=4): return f'a[{b}:{b+n-1}]'
def sr(b, n=4): return f's[{b}:{b+n-1}]'

V_LANE, V_V, V_WQ, V_WO, V_XR, V_ST = 1, 2, 3, 4, 5, 6
V_T0, V_T1, V_T2, V_T3 = 7, 8, 9, 10
V_MC, V_X, V_Y = 11, 12, 13
V_XB = 14
V_XR2 = 15
F = 16
V_KD = 32
V_KR = 36
V_NM = 40
V_M = 44
V_XDM = 44
V_AL = 48
V_ONE = 52
V_TMP = 56
SB = [64, 128]
VS = 192
ACC = 0
LACC = 128
Q = 144
KF = 208

sW, sB, sHG, sH, sISA = 3, 4, 5, 6, 7
sXW, sXKB, sR4, sRR, sKD = 8, 9, 10, 11, 12
sGRP, sOLD, sSPIN = 13, 14, 15
sX, sWQ, sK, sV, sWO, sWS = 44, 48, 52, 56, 60, 64
sSELL, sSELH, sC = 68, 69, 70
sT0, sT1, sT2, sT3 = 71, 72, 73, 74
sKS, sKSP, sCNT, sKOFF, sVOFF, sHOFF = 75, 76, 77, 78, 79, 80
sWOB, sKL, sT4, sT5, sP = 81, 82, 83, 84, 85
sRET = 86
sDBG, sNON, sFLG = 16, 42, 20
V_NON = 8
WS_OFF = 0x100000
FLG_OFF = 0x80000


def gen(kvA='', kvB='', w_pol='', stamps=False, inred=True, spin=4000, st_pol='sc1', force_timeout=False, rot=0):
    a = Asm()
    wp = (' ' + w_pol) if w_pol else ''
    a.raw(HEADER.rstrip())
    if inred:
        a.raw("; @launch grid=(256,1,1) block=(256,1,1) lds=131072")
    else:
        a.raw(f"; @launch kernel={NAME}_kernel grid=(256,1,1) block=(256,1,1) lds=131072")
        a.raw("; @launch kernel=reduce_kernel grid=(256,1,1) block=(256,1,1) lds=0")
    if stamps:
        a.raw("; pstamps=1024")
    a.raw('.amdgcn_target "amdgcn-amd-amdhsa--gfx950"')
    a.raw('.text')
    a.raw(f'.globl {NAME}_kernel')
    a.raw('.p2align 8')
    a.raw(f'.type {NAME}_kernel,@function')
    a.label(f'{NAME}_kernel')
    a('s_cmp_ge_u32 s2, 256')
    a('s_cbranch_scc1 L_end')

    def stamp(i):
        if stamps:
            a.wait(lg=0)
            a('s_memrealtime s[98:99]')
            a.wait(lg=0)
            a(f's_mov_b32 s{88+i}, s98')
    stamp(0)
    a('s_load_dwordx16 s[16:31], s[0:1], 0')
    a('s_load_dwordx8 s[32:39], s[0:1], 64')
    a('s_load_dwordx2 s[40:41], s[0:1], 96')
    a('v_lshrrev_b32 v1, 6, v0')
    a(f'v_readfirstlane_b32 s{sW}, v1')
    a(f'v_and_b32 v{V_LANE}, 63, v0')
    a(f's_and_b32 s{sHG}, s2, 7')
    a(f's_lshr_b32 s{sT0}, s2, 3')
    a(f's_and_b32 s{sB}, s{sT0}, 15')
    a(f's_lshr_b32 s{sISA}, s{sT0}, 4')
    a(f's_lshl_b32 s{sH}, s{sHG}, 2')
    a(f's_add_u32 s{sH}, s{sH}, s{sW}')
    a(f's_lshl_b32 s{sKL}, s{sW}, 15')
    a(f's_lshl_b32 s{sXW}, s{sW}, 14')
    a(f's_and_b32 s{sXKB}, s{sB}, 3')
    a(f's_lshl_b32 s{sR4}, s{sXKB}, 2')
    a(f's_lshr_b32 s{sRR}, s{sB}, 2')
    a(f's_lshl_b32 s{sHOFF}, s{sH}, 8')
    a(f'v_and_b32 v{V_T0}, 15, v{V_LANE}')
    a(f'v_lshrrev_b32 v{V_T1}, 4, v{V_LANE}')
    for n in range(4):
        a(f'v_or_b32 v{V_T2}, {4*n}, v{V_T1}')
        a(f'v_xor_b32 v{V_T2}, v{V_T2}, v{V_T0}')
        a(f'v_lshlrev_b32 v{V_T2}, 4, v{V_T2}')
        a(f'v_lshl_add_u32 v{V_T2}, v{V_T1}, 10, v{V_T2}')
        a(f'v_add_u32 v{V_XDM+n}, {3*n*1024}, v{V_T2}')
    a(f'v_lshlrev_b32 v{V_WQ}, 16, v{V_T1}')
    a(f'v_lshl_add_u32 v{V_WQ}, v{V_T0}, 4, v{V_WQ}')
    a.wait(lg=0)
    a(f's_cmp_eq_u32 s{sISA}, 1')
    def sel(dst, pa, pb):
        a(f's_cselect_b32 s{dst}, s{pa}, s{pb}')
        a(f's_cselect_b32 s{dst+1}, s{pa+1}, s{pb+1}')
    sel(sX, 16, 26); sel(sWQ, 22, 32); sel(sK, 18, 28); sel(sV, 20, 30); sel(sWO, 24, 34)
    a(f's_lshl_b32 s{sT0}, s{sB}, 16')
    a(f's_add_u32 s{sX}, s{sX}, s{sT0}'); a(f's_addc_u32 s{sX+1}, s{sX+1}, 0')
    def fin_srd(r, size):
        a(f's_and_b32 s{r+1}, s{r+1}, 0xffff')
        a(f's_mov_b32 s{r+2}, {size}')
        a(f's_mov_b32 s{r+3}, 0x20000')
    fin_srd(sX, 65536); fin_srd(sWQ, 4 << 20)

    pol = {'p': ''}

    def need(tag):
        idx = [i for i, d in enumerate(a.vm) if tag in d]
        if idx:
            a.wait(vm=len(a.vm) - 1 - idx[-1])

    def inc(s):
        a(f's_add_u32 s{s}, s{s}, 1')

    def ks_of(dst, s):
        a(f's_add_u32 s{dst}, s{s}, s{sR4}'); a(f's_and_b32 s{dst}, s{dst}, 12')
        a(f's_add_u32 s{sT5}, s{s}, s{sRR}'); a(f's_and_b32 s{sT5}, s{sT5}, 3')
        a(f's_or_b32 s{dst}, s{dst}, s{sT5}')

    def x_dma():
        L = []
        for n in range(4):
            def ld(n=n):
                if n == 0:
                    a(f's_lshl_b32 s{sT0}, s{sXKB}, 8'); a(f's_add_u32 s{sT0}, s{sT0}, s{sXW}')
                    a(f's_lshl_b32 s{sT4}, s{sXKB}, 12'); a(f's_add_u32 s{sT4}, s{sT4}, s{sKL}')
                    a(f's_add_u32 m0, s{sT4}, 16384')
                a(f'buffer_load_dwordx4 v{V_XDM+n}, {sr(sX)}, s{sT0} offen offset:{n*1024}{wp} lds')
                a.vm[-1] = {('x', 0)}
                if n == 3:
                    a(f's_add_u32 s{sXKB}, s{sXKB}, 1'); a(f's_and_b32 s{sXKB}, s{sXKB}, 3')
            L.append(ld)
        return L

    def wq_block_loads(base, sks):
        L = []
        for i in range(8):
            def ld(i=i):
                if i == 0:
                    ks_of(sT2, sks)
                    a(f's_lshl_b32 s{sT2}, s{sT2}, 18')
                    a(f's_add_u32 s{sT2}, s{sT2}, s{sHOFF}')
                else:
                    a(f's_add_u32 s{sT2}, s{sT2}, 8192')
                a(f'buffer_load_dwordx4 {vr(base + 4*i)}, v{V_WQ}, {sr(sWQ)}, s{sT2} offen{wp}')
                if i == 7: inc(sks)
            L.append(ld)
        return L

    def wo_block_loads(base, sks):
        L = []
        for i in range(8):
            def ld(i=i):
                if i == 0:
                    ks_of(sT3, sks)
                    a(f's_lshr_b32 s{sT2}, s{sT3}, 2'); a(f's_lshl_b32 s{sT2}, s{sT2}, 17')
                    a(f's_and_b32 s{sT3}, s{sT3}, 3'); a(f's_lshl_b32 s{sT3}, s{sT3}, 13')
                    a(f's_add_u32 s{sT2}, s{sT2}, s{sT3}'); a(f's_add_u32 s{sT2}, s{sT2}, s{sWOB}')
                if i == 4:
                    a(f's_add_u32 s{sT2}, s{sT2}, 4096')
                a(f'buffer_load_dwordx4 {vr(base + 4*i)}, v{V_WO}, {sr(sWO)}, s{sT2} offen offset:{(i&3)*1024}{wp}')
                if i == 7: inc(sks)
            L.append(ld)
        return L

    def k_dma(buf, n):
        def ld():
            if n % 4 == 0:
                a(f's_add_u32 s{sT0}, s{sKOFF}, {n*1024}')
                a(f's_add_u32 m0, s{sKL}, {buf*16384 + n*1024}')
            a(f'buffer_load_dwordx4 v{V_KD + (n&3)}, {sr(sK)}, s{sT0} offen offset:{(n&3)*1024}{pol["p"]} lds')
            a.vm[-1] = {('k', buf)}
            if n == 15:
                a(f's_add_u32 s{sKOFF}, s{sKOFF}, 16384'); a(f's_and_b32 s{sKOFF}, s{sKOFF}, 0x1ffff')
        return ld

    def k_dyn():
        L = []
        for u in range(4):
            def ld(u=u):
                if u == 0:
                    a(f's_mov_b32 m0, s{sKD}')
                a(f'buffer_load_dwordx4 v{V_KD + u}, {sr(sK)}, s{sKOFF} offen offset:{u*1024}{pol["p"]} lds')
                a.vm[-1] = {('k', 0)}
                if u == 3:
                    a(f's_add_u32 s{sKOFF}, s{sKOFF}, 4096'); a(f's_and_b32 s{sKOFF}, s{sKOFF}, 0x1ffff')
                    a(f's_add_u32 s{sKD}, s{sKD}, 4096')
            L.append(ld)
        return L

    def v_load(g, i):
        def ld():
            if i % 4 == 0:
                a(f's_add_u32 s{sT1}, s{sVOFF}, {(i//4)*4096}')
            a(f'buffer_load_dwordx4 {vr(VS + (g*8+i)*4)}, v{V_V}, {sr(sV)}, s{sT1} offen offset:{(i%4)*256}{pol["p"]}')
            if i == 7:
                a(f's_add_u32 s{sVOFF}, s{sVOFF}, 8192'); a(f's_and_b32 s{sVOFF}, s{sVOFF}, 0x1ffff')
        return ld

    def perms(blk, fp, fset):
        L = []
        for half, sel_ in ((0, sSELL), (1, sSELH)):
            for p in range(4):
                def pm(half=half, sel_=sel_, p=p):
                    a(f'v_perm_b32 v{F + fset*8 + half*4 + p}, v{blk + (2*p+1)*4 + fp}, v{blk + (2*p)*4 + fp}, s{sel_}')
                L.append(pm)
        return L

    def weave(prim, fill):
        tot = sum(c for c, _ in fill)
        done = 0; k = 0
        n = len(prim)
        for i, p in enumerate(prim):
            p()
            tgt = tot * (i + 1) / n
            while k < len(fill) and done + fill[k][0] * 0.5 <= tgt:
                fill[k][1](); done += fill[k][0]; k += 1
        while k < len(fill):
            fill[k][1](); k += 1

    def mix(src, ins, stride):
        out = []; vi = 0
        for i, x in enumerate(src):
            if i % stride == 0 and vi < len(ins):
                out.append(ins[vi]); vi += 1
            out.append(x)
        return out + ins[vi:]

    def gemm_prims(blk, bfr, ones=False, next_first=None, first=False):
        P = []
        for fp in range(4):
            nxt = perms(blk, fp + 1, (fp + 1) & 1) if fp < 3 else list(next_first or [])
            idx = 0
            for half in range(2):
                f = 2*fp + half
                for qt in range(4):
                    acc = ACC + (f*4 + qt)*4
                    def mf(acc=acc, fp=fp, half=half, qt=qt, extra=(nxt[idx] if idx < len(nxt) else None)):
                        c = '0' if first else ar(acc)
                        a(f'v_mfma_f32_16x16x32_bf16 {ar(acc)}, {vr(F + (fp&1)*8 + half*4)}, {bfr[qt]}, {c}')
                        if extra: extra()
                    P.append(mf); idx += 1
            if ones:
                def mo(qt=fp):
                    c = '0' if first else ar(LACC + qt*4)
                    a(f'v_mfma_f32_16x16x32_bf16 {ar(LACC + qt*4)}, {vr(V_ONE)}, {bfr[qt]}, {c}')
                P.append(mo)
        return P

    def x_reads(buf, sks):
        L = []
        def adr():
            ks_of(sT3, sks)
            a(f's_and_b32 s{sT4}, s{sT3}, 3'); a(f's_lshl_b32 s{sT4}, s{sT4}, 6')
            a(f's_lshr_b32 s{sT3}, s{sT3}, 2'); a(f's_lshl_b32 s{sT3}, s{sT3}, 12')
            a(f's_or_b32 s{sT3}, s{sT3}, s{sT4}')
            a(f'v_xor_b32 v{V_XR}, s{sT3}, v{V_XB}')
            a(f'v_add_u32 v{V_XR2}, 0x10000, v{V_XR}')
            inc(sks)
        L.append(adr)
        for qt in range(4):
            def rd(qt=qt):
                reg = V_XR if qt < 2 else V_XR2
                a(f'ds_read_b128 {ar(KF + buf*16 + qt*4)}, v{reg} offset:{(qt&1)*32768 + 16384}')
            L.append(rd)
        return L

    def o_reads(buf, sks):
        L = []
        def adr():
            ks_of(sT4, sks)
            a(f's_lshr_b32 s{sT3}, s{sT4}, 2'); a(f's_lshl_b32 s{sT3}, s{sT3}, 15')
            a(f's_and_b32 s{sT4}, s{sT4}, 3'); a(f's_lshl_b32 s{sT4}, s{sT4}, 12')
            a(f's_add_u32 s{sT3}, s{sT3}, s{sT4}')
            a(f'v_add_u32 v{V_XR}, s{sT3}, v{V_ST}')
            inc(sks)
        L.append(adr)
        for qt in range(4):
            def rd(qt=qt):
                a(f'ds_read_b128 {ar(KF + buf*16 + qt*4)}, v{V_XR} offset:{qt*1024}')
            L.append(rd)
        return L

    def loop(tag, count, body):
        a(f's_mov_b32 s{sCNT}, {count}')
        a.flush_hazards()
        entry = a.state()
        save_out, save_hist, save_n = a.out, list(a.hist), a.n_ins
        st = entry
        for _ in range(4):
            a.out = []; a.set_state(st); a.hist = []
            body()
            st2 = a.state()
            if st2 == st:
                break
            st = st2
        else:
            raise AssertionError('no steady state ' + tag)
        a.out, a.hist, a.n_ins = save_out, save_hist, save_n
        def covers(X, A, strict):
            for qi in (0, 1):
                E, B = X[qi], A[qi]
                for i, d in enumerate(E):
                    if not d:
                        continue
                    yE = len(E) - 1 - i
                    m = [len(B) - 1 - k for k, e in enumerate(B) if e == d]
                    if m:
                        if yE < min(m):
                            return False
                    elif strict:
                        return False
            return True
        assert covers(entry, st, False), tag
        a.set_state(st)
        a.label(f'L_{tag}')
        a.hist = []
        body()
        a(f's_sub_u32 s{sCNT}, s{sCNT}, 1')
        a(f's_cmp_lg_u32 s{sCNT}, 0')
        a.flush_hazards()
        assert covers(a.state(), st, True), tag
        a(f's_cbranch_scc1 L_{tag}')

    def proj_phase(tag, wb, breads, block_loads, extra, pre):
        for pm in perms(wb[0], 0, 0): pm()
        def step(it, u):
            fin = it == 'last' and u == 3
            pre(it, u)
            fill = []
            if not fin:
                fill += [(1, c) for c in breads((u + 1) & 1, sKS)]
            if it != 'last' or u == 0:
                fill += [(2, c) for c in block_loads(wb[(u - 1) % 4], sKSP)]
            fill += [(2, c) for c in extra(it, u)]
            nf = None if fin else perms(wb[(u + 1) % 4], 0, 0)
            weave(gemm_prims(wb[u], [ar(KF + (u & 1)*16 + qt*4) for qt in range(4)], next_first=nf,
                             first=(it == 'first' and u == 0)), fill)
        for u in range(4): step('first', u)
        loop(tag, 2, lambda: [step('mid', u) for u in range(4)])
        for u in range(4): step('last', u)

    def expand(src, dst):
        a(f'v_mov_b32 v{dst+0}, v{src}')
        a(f'v_mov_b32 v{dst+2}, v{src}')
        a(f'v_permlane16_swap_b32 v{dst+0}, v{dst+2}')
        a(f'v_mov_b32 v{dst+1}, v{dst+0}')
        a(f'v_mov_b32 v{dst+3}, v{dst+2}')
        a(f'v_permlane32_swap_b32 v{dst+0}, v{dst+1}')
        a(f'v_permlane32_swap_b32 v{dst+2}, v{dst+3}')

    WB = [SB[0], SB[0] + 32, SB[1], SB[1] + 32]
    a(f's_mov_b32 s{sKS}, 0')
    a(f's_mov_b32 s{sKSP}, 0')
    for c in x_dma(): c()
    for c in wq_block_loads(WB[0], sKSP): c()
    a(f's_mov_b32 s{sSELL}, 0x05040100')
    a(f's_mov_b32 s{sSELH}, 0x07060302')
    cval = (128 ** -0.5) * math.log2(math.e)
    a(f's_mov_b32 s{sC}, {f32bits(cval)}')
    a(f'v_lshlrev_b32 v{V_V}, 10, v{V_T1}')
    a(f'v_lshl_add_u32 v{V_V}, v{V_T0}, 4, v{V_V}')
    a(f'v_lshlrev_b32 v{V_WO}, 15, v{V_T1}')
    a(f'v_lshl_add_u32 v{V_WO}, v{V_T0}, 4, v{V_WO}')
    a(f'v_lshlrev_b32 v{V_ST}, 4, v{V_LANE}')
    for m in range(4):
        fm = (4*m) ^ (((4*m) & 4) << 1)
        a(f'v_or_b32 v{V_T2}, {fm}, v{V_T1}')
        a(f'v_xor_b32 v{V_T2}, v{V_T2}, v{V_T0}')
        a(f'v_lshlrev_b32 v{V_T2}, 4, v{V_T2}')
        a(f'v_lshl_add_u32 v{V_KD+m}, v{V_T1}, 8, v{V_T2}')
    a(f'v_and_b32 v{V_T2}, 4, v{V_T0}')
    a(f'v_lshlrev_b32 v{V_T2}, 1, v{V_T2}')
    a(f'v_xor_b32 v{V_T2}, v{V_T2}, v{V_T0}')
    a(f'v_lshlrev_b32 v{V_T3}, 2, v{V_T1}')
    a(f'v_xor_b32 v{V_T2}, v{V_T2}, v{V_T3}')
    for s in range(4):
        a(f'v_xor_b32 v{V_T3}, {s}, v{V_T2}')
        a(f'v_lshlrev_b32 v{V_T3}, 4, v{V_T3}')
        a(f'v_lshl_add_u32 v{V_T3}, v{V_T0}, 8, v{V_T3}')
        a(f'v_add_u32 v{V_KR+s}, s{sKL}, v{V_T3}')
    a(f'v_xor_b32 v{V_T2}, v{V_T1}, v{V_T0}')
    a(f'v_lshlrev_b32 v{V_T2}, 4, v{V_T2}')
    a(f'v_lshl_add_u32 v{V_XB}, v{V_T0}, 8, v{V_T2}')
    for i in range(4):
        a(f'v_mov_b32 v{V_ONE+i}, 0x3f803f80')
    a(f's_lshl_b32 s{sT0}, s{sB}, 3'); a(f's_add_u32 s{sT0}, s{sT0}, s{sHG}')
    a(f's_lshl_b32 s{sT1}, s{sB}, 5'); a(f's_add_u32 s{sT1}, s{sT1}, s{sH}')
    a(f's_cmp_eq_u32 s{sISA}, 1')
    a(f's_cselect_b32 s{sT0}, s{sT0}, s{sT1}')
    a(f's_lshl_b32 s{sT0}, s{sT0}, 17')
    for r_ in (sK, sV):
        a(f's_add_u32 s{r_}, s{r_}, s{sT0}'); a(f's_addc_u32 s{r_+1}, s{r_+1}, 0')
    fin_srd(sK, 131072); fin_srd(sV, 131072); fin_srd(sWO, 4 << 20)
    a(f's_xor_b32 s{sGRP}, s{sISA}, 1'); a(f's_lshl_b32 s{sGRP}, s{sGRP}, 4'); a(f's_add_u32 s{sGRP}, s{sGRP}, s{sB}')
    a(f's_lshl_b32 s{sT0}, s{sGRP}, 19')
    a(f's_add_u32 s{sT0}, s{sT0}, {WS_OFF}')
    a(f's_add_u32 s{sWS}, s40, s{sT0}'); a(f's_addc_u32 s{sWS+1}, s41, 0')
    fin_srd(sWS, 524288)
    a(f's_lshl_b32 s{sWOB}, s{sHG}, 19'); a(f's_lshl_b32 s{sT0}, s{sW}, 8'); a(f's_add_u32 s{sWOB}, s{sWOB}, s{sT0}')
    a(f's_mul_i32 s{sKOFF}, s{sW}, {rot*16384}')
    a(f's_mul_i32 s{sKOFF}, s{sKOFF}, s{sISA}')
    a(f's_mov_b32 s{sVOFF}, s{sKOFF}')
    a(f's_mov_b32 s{sKD}, s{sKL}')
    for u in (1, 2):
        for c in wq_block_loads(WB[u], sKSP): c()
    if DIAG == 1: stamp(1)
    need(('x', 0))
    a('s_barrier')
    if DIAG == 1: stamp(2)
    for c in x_reads(0, sKS): c()

    two_paths = kvA != kvB
    if two_paths:
        a(f's_cmp_eq_u32 s{sISA}, 1')
        a.flush_hazards()
        a('s_cbranch_scc1 L_pathA')
    fork_state = a.state()

    def main_path(sfx, kv):
        pol['p'] = (' ' + kv) if kv else ''
        def extra(it, u):
            L = []
            if it != 'last' and u == 0: L += x_dma()
            if u == 1: L += k_dyn()
            if it == 'last' and u >= 1:
                lo, hi = {1: (0, 4), 2: (4, 10), 3: (10, 16)}[u]
                L += [v_load(n // 8, n % 8) for n in range(lo, hi)]
            return L
        def pre(it, u):
            if it != 'last' and u == 3:
                need(('x', 0))
                a('s_barrier')
        proj_phase('p1' + sfx, WB, x_reads, wq_block_loads, extra, pre)
        stamp(1 if not DIAG else 3)
        a.wait(lg=0)
        a('s_barrier')
        n = 0
        for qt in range(4):
            for r in range(4):
                k_dma(1, n)(); n += 1
                for fp in range(4):
                    t0 = V_TMP + (fp*2); t1 = t0 + 1
                    a(f'v_accvgpr_read_b32 v{t0}, a{ACC + ((2*fp)*4 + qt)*4 + r}')
                    a(f'v_accvgpr_read_b32 v{t1}, a{ACC + ((2*fp+1)*4 + qt)*4 + r}')
                for fp in range(4):
                    t0 = V_TMP + (fp*2); t1 = t0 + 1
                    a(f'v_cvt_pk_bf16_f32 v{t0}, v{t0}, v{t1}')
                for fp in range(4):
                    a(f'v_accvgpr_write_b32 a{Q + (qt*4 + r)*4 + fp}, v{V_TMP + fp*2}')
        stamp(2 if not DIAG else 4)


        def qk_prims(buf, Sd):
            def rd(n):
                kt, s = divmod(n, 4)
                a(f'ds_read_b128 {ar(KF + (n % 8)*4)}, v{V_KR+s} offset:{buf*16384 + kt*4096}')
            P = []
            pre_ = [lambda n=n: rd(n) for n in range(4)]
            for n in range(16):
                kt, s = divmod(n, 4)
                for qt in range(4):
                    def mf(n=n, kt=kt, s=s, qt=qt):
                        sreg = Sd + (kt*4 + qt)*4
                        c = '0' if s == 0 else vr(sreg)
                        a(f'v_mfma_f32_16x16x32_bf16 {vr(sreg)}, {ar(KF + (n % 8)*4)}, {ar(Q + (qt*4+s)*4)}, {c}')
                        if qt == 0 and n + 4 < 16:
                            rd(n + 4)
                    P.append(mf)
            return pre_, P

        def p_fill(Sc, g):
            L = []
            for qt in range(4):
                for kt in (2*g, 2*g + 1):
                    b = Sc + (kt*4 + qt)*4
                    for r in range(4):
                        L.append((1, lambda b=b, r=r, qt=qt: a(f'v_fma_f32 v{b+r}, v{b+r}, s{sC}, v{V_NM+qt}')))
                    for r in range(4):
                        L.append((2, lambda b=b, r=r: a(f'v_exp_f32 v{b+r}, v{b+r}')))
                    d = Sc + ((2*g)*4 + qt)*4 + (kt & 1)*2
                    L.append((1, lambda b=b, d=d: a(f'v_cvt_pk_bf16_f32 v{d}, v{b}, v{b+1}')))
                    L.append((1, lambda b=b, d=d: a(f'v_cvt_pk_bf16_f32 v{d+1}, v{b+2}, v{b+3}')))
            return L

        def max_fill(Sn):
            L = []
            for i in range(8):
                for qt in range(4):
                    vals = [Sn + (kt*4 + qt)*4 + r for kt in range(4) for r in range(4)]
                    if i == 0:
                        L.append((1, lambda qt=qt, vals=vals: a(f'v_max3_f32 v{V_M+qt}, v{vals[0]}, v{vals[1]}, v{vals[2]}')))
                    elif i < 7:
                        L.append((1, lambda qt=qt, vals=vals, i=i: a(f'v_max3_f32 v{V_M+qt}, v{V_M+qt}, v{vals[2*i+1]}, v{vals[2*i+2]}')))
                    else:
                        L.append((1, lambda qt=qt, vals=vals: a(f'v_max_f32 v{V_M+qt}, v{V_M+qt}, v{vals[15]}')))
            for t in (f'v_permlane32_swap_b32 v{V_M}, v{V_M+1}', f'v_permlane32_swap_b32 v{V_M+2}, v{V_M+3}',
                      f'v_max_f32 v{V_X}, v{V_M}, v{V_M+1}', f'v_max_f32 v{V_Y}, v{V_M+2}, v{V_M+3}',
                      f'v_permlane16_swap_b32 v{V_X}, v{V_Y}', f'v_max_f32 v{V_X}, v{V_X}, v{V_Y}',
                      f'v_mul_f32 v{V_X}, s{sC}, v{V_X}'):
                L.append((1, lambda t=t: a(t)))
            return L

        def check_rescale():
            a(f'v_sub_f32 v{V_Y}, v{V_X}, v{V_MC}')
            a(f'v_cmp_lt_f32 vcc, {f32bits(8.0)}, v{V_Y}')
            a.flush_hazards()
            lbl = f'L_fast{sfx}_{a.n_ins}'
            a(f's_cbranch_vccz {lbl}')
            a(f's_call_b64 s[{sRET}:{sRET+1}], L_slow')
            a.label(lbl)

        def iteration(c, has_qk=True, has_kdma=True, has_v=True, tail_fill=None, first_fill=None, first=False):
            Sc, Sn = SB[c & 1], SB[(c + 1) & 1]
            nb = (c + 1) & 1
            pf0, pf1 = p_fill(Sc, 0), p_fill(Sc, 1)
            vg1 = [(2, v_load(1, i)) for i in range(8)] if first_fill is None else first_fill
            cut = len(pf1) // 2
            first_perms = [(1, p) for p in perms(VS, 0, 0)]
            if has_qk:
                need(('k', nb))
                pre_, P = qk_prims(nb, Sn)
                for p in pre_: p()
                weave(P, mix(pf0 + pf1[:cut], vg1, 5) + first_perms)
            else:
                for _, f in mix(pf0 + pf1[:cut], vg1, 4) + first_perms: f()
            kd = [(2, k_dma(nb, n)) for n in range(16)] if (has_kdma and has_qk) else []
            if kd:
                a.wait(lg=0)
            P = gemm_prims(VS, [vr(Sc + qt*4) for qt in range(4)], ones=True, next_first=perms(VS + 32, 0, 0), first=first)
            weave(P, mix(pf1[cut:], kd[:8], 5))
            P = gemm_prims(VS + 32, [vr(Sc + (8 + qt)*4) for qt in range(4)], ones=True)
            vg0 = [(2, v_load(0, i)) for i in range(8)] if has_v else list(tail_fill or [])
            mem = vg0 + kd[8:]
            src = max_fill(Sn) if has_qk else []
            weave(P, mix(src, mem, 2))
            if has_qk:
                check_rescale()

        need(('k', 0))
        pre_, P = qk_prims(0, SB[0])
        for p in pre_ + P: p()
        a.wait(lg=0)
        kd = [(1, k_dma(0, n)) for n in range(16)]
        for _, f in mix(max_fill(SB[0]), kd, 2): f()
        a(f'v_mov_b32 v{V_MC}, v{V_X}')
        a(f'v_sub_f32 v{V_X}, 0, v{V_X}')
        expand(V_X, V_NM)
        iteration(0, first_fill=[], first=True)
        if inred:
            a(f's_cmp_lg_u32 s{sW}, 0')
            a(f's_cbranch_scc1 L_nononce{sfx}')
            a(f's_mov_b32 s{sDBG}, s38'); a(f's_mov_b32 s{sDBG+1}, s39')
            fin_srd(sDBG, 256)
            a.force_wait('lgkmcnt(0)')
            a('s_memrealtime s[96:97]')
            a.force_wait('lgkmcnt(0)')
            a(f's_or_b32 s{sNON}, s96, 1')
            a('s_mov_b64 exec, 1')
            a(f'v_mov_b32 v{V_NON}, s{sNON}')
            a(f'v_mov_b32 v{V_NON+1}, 0')
            a(f'buffer_atomic_cmpswap v[{V_NON}:{V_NON+1}], v{V_NON+1}, {sr(sDBG)}, 0 offen offset:128 sc0 sc1')
            a.vm.pop()
            a('s_mov_b64 exec, -1')
            a.label(f'L_nononce{sfx}')
        loop('p2' + sfx, 2, lambda: [iteration(1), iteration(2)])
        iteration(5, has_kdma=False)
        iteration(6, has_kdma=False)
        WB3 = [SB[0], SB[0] + 32, VS, VS + 32]
        a(f's_mov_b32 s{sKSP}, 0')
        ff = [(2, v_load(1, i)) for i in range(8)]
        for u in range(2):
            ff += [(2, c) for c in wo_block_loads(WB3[u], sKSP)]
        tf = [(2, c) for c in wo_block_loads(WB3[2], sKSP)]
        iteration(7, has_qk=False, has_v=False, tail_fill=tf, first_fill=ff)
        if not DIAG: stamp(3)
        return WB3

    WB3 = main_path('B', kvB)
    if two_paths:
        a.flush_hazards()
        endB = a.state()
        a('s_branch L_join')
        a.label('L_pathA')
        a.set_state(fork_state); a.hist = []
        main_path('A', kvA)
        a.flush_hazards()
        assert a.state() == endB
        a.label('L_join')

    if inred:
        a(f'v_readfirstlane_b32 s{sT0}, v{V_NON}')
        a(f's_cmp_eq_u32 s{sT0}, 0')
        a(f's_cselect_b32 s{sNON}, s{sNON}, s{sT0}')
    for qt in range(4):
        a(f'v_accvgpr_read_b32 v{V_AL+qt}, a{LACC + qt*4}')
    for qt in range(4):
        a(f'v_rcp_f32 v{V_AL+qt}, v{V_AL+qt}')
    a(f'v_add_u32 v{V_XR}, s{sKL}, v{V_ST}')
    T = SB[1]
    for qt in range(4):
        for r in range(4):
            t = T + ((qt*4 + r) & 3)*12
            for f in range(8):
                a(f'v_accvgpr_read_b32 v{t+f}, a{ACC + (f*4 + qt)*4 + r}')
            for f in range(8):
                a(f'v_mul_f32 v{t+f}, v{t+f}, v{V_AL+qt}')
            for fp in range(4):
                a(f'v_cvt_pk_bf16_f32 v{t+8+fp}, v{t+2*fp}, v{t+2*fp+1}')
            a(f'ds_write_b128 v{V_XR}, {vr(t+8)} offset:{(r*4+qt)*1024}')
    a.wait(lg=0)
    a('s_barrier')
    if not DIAG: stamp(4)

    a(f's_mov_b32 s{sKS}, 0')
    for c in o_reads(0, sKS): c()
    proj_phase('p3', WB3, o_reads, wo_block_loads, lambda it, u: [], lambda it, u: None)
    if not DIAG: stamp(5)
    sp = (' ' + st_pol) if (st_pol and inred) else ''
    a(f's_lshl_b32 s{sT1}, s{sH}, 14')
    for qt in range(4):
        a(f's_add_u32 s{sT0}, s{sT1}, {qt*4096}')
        for r in range(4):
            t = T + ((qt*4 + r) & 3)*12
            for f in range(8):
                a(f'v_accvgpr_read_b32 v{t+f}, a{ACC + (f*4 + qt)*4 + r}')
            for fp in range(4):
                a(f'v_cvt_pk_bf16_f32 v{t+8+fp}, v{t+2*fp}, v{t+2*fp+1}')
            a(f'buffer_store_dwordx4 {vr(t+8)}, v{V_ST}, {sr(sWS)}, s{sT0} offen offset:{r*1024}{sp}')

    def reduce_share(r, load_srd, out_srd, s_src, s_dst, vlin, vout, lp):
        for p in range(8):
            r(f's_add_u32 s{sT2}, s{s_src}, {p*65536}')
            for rr in range(2):
                r(f'buffer_load_dwordx4 {vr(96 + (p*2+rr)*4)}, v{vlin}, {sr(load_srd)}, s{sT2} offen offset:{rr*1024}{lp}')
        r(f's_mov_b32 s{sT3}, 0xffff0000')
        for p in range(8):
            for k in range(8):
                src = 96 + p*8 + k
                if p == 0:
                    r(f'v_lshlrev_b32 v{64+2*k}, 16, v{src}')
                    r(f'v_and_b32 v{65+2*k}, s{sT3}, v{src}')
                else:
                    r(f'v_lshlrev_b32 v{80+(k&3)*2}, 16, v{src}')
                    r(f'v_and_b32 v{81+(k&3)*2}, s{sT3}, v{src}')
                    r(f'v_add_f32 v{64+2*k}, v{64+2*k}, v{80+(k&3)*2}')
                    r(f'v_add_f32 v{65+2*k}, v{65+2*k}, v{81+(k&3)*2}')
        for rr in range(2):
            for k in range(4):
                r(f'v_cvt_pk_bf16_f32 v{88+rr*4+k}, v{64+rr*8+2*k}, v{65+rr*8+2*k}')
            r(f'buffer_store_dwordx4 {vr(88+rr*4)}, v{vout}, {sr(out_srd)}, s{s_dst} offen offset:{rr*16}')

    if inred:
        sOUT = sX
        a(f's_lshl_b32 s{sT0}, s{sB}, 17')
        a(f's_add_u32 s{sOUT}, s36, s{sT0}'); a(f's_addc_u32 s{sOUT+1}, s37, 0')
        fin_srd(sOUT, 131072)
        a(f's_lshl_b32 s{sT0}, s{sGRP}, 8'); a(f's_add_u32 s{sT0}, s{sT0}, {FLG_OFF}')
        a(f's_add_u32 s{sFLG}, s40, s{sT0}'); a(f's_addc_u32 s{sFLG+1}, s41, 0')
        fin_srd(sFLG, 64)
        a(f's_lshl_b32 s{sT5}, s{sHG}, 2')
        a(f'v_and_b32 v{V_T0}, 15, v{V_LANE}'); a(f'v_lshlrev_b32 v{V_T0}, 11, v{V_T0}')
        a(f'v_lshrrev_b32 v{V_T1}, 4, v{V_LANE}'); a(f'v_lshl_add_u32 v{V_T0}, v{V_T1}, 6, v{V_T0}')
        a(f'v_mov_b32 v{V_T2}, 0')
        a(f'v_mov_b32 v{V_Y}, s{sNON}')
        a(f'v_lshlrev_b32 v{V_XR}, 2, v{V_LANE}')
        a.wait(vm=0)
        a('s_barrier')
        if not DIAG: stamp(6)
        a(f's_cmp_lg_u32 s{sW}, 0')
        a('s_cbranch_scc1 L_wait')
        a('s_mov_b64 exec, 1')
        a(f'buffer_store_dword v{V_Y}, v{V_T2}, {sr(sFLG)}, s{sT5} offen sc1')
        a('s_mov_b64 exec, 0xffff')
        a(f's_lshl_b32 s{sP}, 1, s{sHG}')
        a(f's_mov_b32 s{sSPIN}, {spin if not force_timeout else 1}')
        a.label('L_poll')
        a(f'buffer_load_dword v{V_T3}, v{V_XR}, {sr(sFLG)}, 0 offen sc1')
        a.force_wait('vmcnt(0)')
        a(f'v_cmp_eq_u32 vcc, v{V_T3}, v{V_Y}')
        a.flush_hazards()
        a(f's_and_b32 s{sT0}, vcc_lo, 0xff')
        a(f's_cmp_eq_u32 s{sT0}, 0xff')
        a('s_cbranch_scc1 L_arrived')
        a(f's_cmp_eq_u32 s{sSPIN}, 0')
        a('s_cbranch_scc1 L_giveup')
        a('s_sleep 1')
        a(f's_sub_u32 s{sSPIN}, s{sSPIN}, 1')
        a(f's_cmp_lg_u32 s{sSPIN}, 0')
        a('s_cbranch_scc1 L_poll')
        a('s_mov_b64 exec, 1')
        a(f'buffer_store_dword v{V_Y}, v{V_T2}, {sr(sFLG)}, s{sT5} offen offset:32 sc1')
        a.force_wait('vmcnt(0)')
        a('s_mov_b64 exec, 0xffff')
        a('s_branch L_poll')
        a.label('L_giveup')
        a(f's_mov_b32 s{sP}, 0')
        a('s_branch L_pub0')
        a.label('L_arrived')
        a(f's_lshr_b32 s{sT0}, vcc_lo, 8')
        a(f's_and_b32 s{sT0}, s{sT0}, 0xff')
        a(f's_or_b32 s{sP}, s{sP}, s{sT0}')
        a.label('L_pub0')
        a('s_mov_b64 exec, 1')
        a.label('L_publish')
        a(f'v_mov_b32 v{V_T3}, s{sP}')
        a(f'ds_write_b32 v{V_T2}, v{V_T3} offset:16384')
        a('s_mov_b64 exec, -1')
        a.wait(lg=0)
        a.label('L_wait')
        a('s_barrier')
        a(f'ds_read_b32 v{V_T3}, v{V_T2} offset:16384')
        a(f'v_readfirstlane_b32 s{sP}, v{V_T3}')
        a.label('L_share')
        a(f's_cmp_eq_u32 s{sP}, 0')
        a('s_cbranch_scc1 L_fin')
        a(f's_ff1_i32_b32 s{sT0}, s{sP}')
        a(f's_lshl_b32 s{sT1}, 1, s{sT0}')
        a(f's_xor_b32 s{sP}, s{sP}, s{sT1}')
        a(f's_lshl_b32 s{sT0}, s{sT0}, 2'); a(f's_add_u32 s{sT0}, s{sT0}, s{sW}')
        a(f's_lshl_b32 s{sKS}, s{sT0}, 11')
        a(f's_lshr_b32 s{sT1}, s{sT0}, 1'); a(f's_and_b32 s{sT1}, s{sT1}, 3'); a(f's_lshl_b32 s{sKSP}, s{sT1}, 15')
        a(f's_lshr_b32 s{sT1}, s{sT0}, 3'); a(f's_lshl_b32 s{sT1}, s{sT1}, 8'); a(f's_add_u32 s{sKSP}, s{sKSP}, s{sT1}')
        a(f's_and_b32 s{sT1}, s{sT0}, 1'); a(f's_lshl_b32 s{sT1}, s{sT1}, 5'); a(f's_add_u32 s{sKSP}, s{sKSP}, s{sT1}')
        a(f's_xor_b32 s{sT1}, s{sISA}, 1'); a(f's_lshl_b32 s{sT1}, s{sT1}, 10'); a(f's_add_u32 s{sKSP}, s{sKSP}, s{sT1}')
        reduce_share(a, sWS, sOUT, sKS, sKSP, V_ST, V_T0, ' sc1')
        a.wait(vm=0)
        a.flush_hazards()
        a('s_branch L_share')
        a.label('L_fin')
    if stamps:
        a.wait(vm=0)
        stamp(7 if inred else 6)
        if not inred: a('s_mov_b32 s95, s94')
        a('s_mov_b32 s52, s40'); a('s_and_b32 s53, s41, 0xffff'); a('s_mov_b32 s54, 0x100000'); a('s_mov_b32 s55, 0x20000')
        a(f's_lshl_b32 s{sT0}, s2, 2'); a(f's_add_u32 s{sT0}, s{sT0}, s{sW}'); a(f's_lshl_b32 s{sT0}, s{sT0}, 5')
        for i in range(8):
            a(f'v_mov_b32 v{16+i}, s{88+i}')
        a('v_mov_b32 v28, 0')
        a('s_mov_b64 exec, 1')
        a(f'buffer_store_dwordx4 v[16:19], v28, s[52:55], s{sT0} offen')
        a(f'buffer_store_dwordx4 v[20:23], v28, s[52:55], s{sT0} offen offset:16')
    a.label('L_end')
    a('s_endpgm')

    a.label('L_slow')
    a.set_state(([], [])); a.hist = []
    a(f'v_max_f32 v{V_X}, v{V_X}, v{V_MC}')
    a(f'v_sub_f32 v{V_Y}, v{V_MC}, v{V_X}')
    a(f'v_exp_f32 v{V_Y}, v{V_Y}')
    a(f'v_mov_b32 v{V_MC}, v{V_X}')
    a(f'v_sub_f32 v{V_X}, 0, v{V_X}')
    expand(V_X, V_NM)
    expand(V_Y, V_AL)
    for f in range(9):
        for qh in range(2):
            rr = [(qt, r) for qt in (2*qh, 2*qh + 1) for r in range(4)]
            for k, (qt, r) in enumerate(rr):
                a(f'v_accvgpr_read_b32 v{V_TMP+k}, a{ACC + (f*4+qt)*4 + r}')
            for k, (qt, r) in enumerate(rr):
                a(f'v_mul_f32 v{V_TMP+k}, v{V_TMP+k}, v{V_AL+qt}')
            for k, (qt, r) in enumerate(rr):
                a(f'v_accvgpr_write_b32 a{ACC + (f*4+qt)*4 + r}, v{V_TMP+k}')
    a.flush_hazards()
    a(f's_setpc_b64 s[{sRET}:{sRET+1}]')

    def desc(name, nv, acc):
        return '\n'.join([
            f'.amdhsa_kernel {name}',
            f'  .amdhsa_next_free_vgpr {nv}', '  .amdhsa_next_free_sgpr 102', f'  .amdhsa_accum_offset {acc}',
            '  .amdhsa_group_segment_fixed_size 0', '  .amdhsa_kernarg_size 104', '  .amdhsa_user_sgpr_count 2',
            '  .amdhsa_user_sgpr_kernarg_segment_ptr 1', '  .amdhsa_system_sgpr_workgroup_id_x 1', '.end_amdhsa_kernel'])
    tail = '.section .rodata,"a"\n.p2align 6\n' + desc(f'{NAME}_kernel', 512, 256) + '\n'
    rtext = ''
    if not inred:
        r = Asm()
        r.raw('.globl reduce_kernel'); r.raw('.p2align 8'); r.raw('.type reduce_kernel,@function')
        r.label('reduce_kernel')
        r('s_cmp_ge_u32 s2, 256'); r('s_cbranch_scc1 L_rend')
        r('s_load_dwordx2 s[4:5], s[0:1], 80')
        r('s_load_dwordx2 s[6:7], s[0:1], 96')
        r('v_lshrrev_b32 v1, 6, v0'); r('v_readfirstlane_b32 s3, v1')
        r('v_and_b32 v1, 63, v0'); r('v_lshlrev_b32 v2, 4, v1')
        r('s_lshl_b32 s8, s2, 2'); r('s_add_u32 s8, s8, s3')
        r('s_lshr_b32 s9, s8, 5')
        r('s_and_b32 s10, s8, 31')
        r.wait(lg=0)
        r(f's_add_u32 s16, s6, {WS_OFF}'); r('s_addc_u32 s17, s7, 0'); r('s_and_b32 s17, s17, 0xffff')
        r(f's_mov_b32 s18, {16 << 20}'); r('s_mov_b32 s19, 0x20000')
        r('s_mov_b32 s20, s4'); r('s_and_b32 s21, s5, 0xffff'); r('s_mov_b32 s22, 0x200000'); r('s_mov_b32 s23, 0x20000')
        r('s_and_b32 s24, s9, 15'); r('s_lshl_b32 s24, s24, 17')
        r('s_lshr_b32 s25, s9, 4'); r('s_lshl_b32 s25, s25, 10'); r('s_add_u32 s24, s24, s25')
        r('s_lshr_b32 s25, s10, 1'); r('s_and_b32 s25, s25, 3'); r('s_lshl_b32 s25, s25, 15'); r('s_add_u32 s24, s24, s25')
        r('s_lshr_b32 s25, s10, 3'); r('s_lshl_b32 s25, s25, 8'); r('s_add_u32 s24, s24, s25')
        r('s_and_b32 s25, s10, 1'); r('s_lshl_b32 s25, s25, 5'); r('s_add_u32 s24, s24, s25')
        r('v_and_b32 v3, 15, v1'); r('v_lshlrev_b32 v3, 11, v3'); r('v_lshrrev_b32 v4, 4, v1'); r('v_lshl_add_u32 v3, v4, 6, v3')
        r('s_lshl_b32 s13, s9, 19'); r('s_lshl_b32 s14, s10, 11'); r('s_add_u32 s13, s13, s14')
        reduce_share(r, 16, 20, 13, 24, 2, 3, '')
        r.label('L_rend')
        r('s_endpgm')
        rtext = r.text()
        tail += '.p2align 6\n' + desc('reduce_kernel', 160, 160) + '\n'
    return a.text() + rtext + tail


if __name__ == '__main__':
    import argparse
    ap = argparse.ArgumentParser()
    ap.add_argument('-o', default='k3.s')
    ap.add_argument('--kvA', default=''); ap.add_argument('--kvB', default=''); ap.add_argument('--w', default='')
    ap.add_argument('--stamps', action='store_true'); ap.add_argument('--sep', action='store_true')
    ap.add_argument('--timeout', action='store_true'); ap.add_argument('--rot', type=int, default=0)
    args = ap.parse_args()
    open(args.o, 'w').write(gen(args.kvA, args.kvB, args.w, args.stamps, inred=not args.sep, force_timeout=args.timeout, rot=args.rot))
```
